```python
import torch

def _softmax(x, axis=-1):
    return torch.softmax(x, dim=axis)
def _gelu(x):
    return torch.nn.functional.gelu(x, approximate="tanh")
def _silu(x):
    return torch.nn.functional.silu(x)
def _sigmoid(x):
    return torch.sigmoid(x)
def _layernorm(x, axis=-1, eps=1e-5):
    m = x.mean(dim=axis, keepdim=True)
    v = x.var(dim=axis, keepdim=True, unbiased=False)
    return (x - m) / torch.sqrt(v + eps)
def _scatter_add(tgt, idx, src, axis=0):
    return tgt.clone().index_add_(axis, idx, src)
def _segment_sum(src, seg, n):
    out = torch.zeros((n,) + src.shape[1:], dtype=src.dtype)
    return out.index_add_(0, seg, src)
def _pad(x, pw):
    flat = tuple(v for pair in reversed(pw) for v in pair)
    return torch.nn.functional.pad(x, flat)

kernel_name = 'concat_heads__ssm_conv_s4d__ssm_conv_s4__prompt'

def setup_inputs():

    _w = (lambda a: (lambda t: t.to(torch.bfloat16) if t.is_floating_point() else t)(torch.as_tensor(a)))
    def _A_setup():
        Bsz, L, D, N = 1, 2048, 640, 192
        return {
            "u": _w((lambda *s: torch.randn(*s, dtype=torch.bfloat16) * 0.05)(Bsz, L, D)),
            "log_A_real": _w((lambda *s: torch.randn(*s, dtype=torch.bfloat16) * 6.4)(D, N) * 0.5),
            "A_imag": _w((lambda *s: torch.randn(*s, dtype=torch.bfloat16) * 0.05)(D, N) * 3.14),
            "C_real": _w((lambda *s: torch.randn(*s, dtype=torch.bfloat16) * 0.05)(D, N) / N ** 0.5),
            "C_imag": _w((lambda *s: torch.randn(*s, dtype=torch.bfloat16) * 0.05)(D, N) / N ** 0.5),
            "log_dt": _w((lambda *s: torch.randn(*s, dtype=torch.bfloat16) * 0.05)(D) * 0.5 - 4.0),
            "D_skip": _w((lambda *s: torch.randn(*s, dtype=torch.bfloat16) * 0.05)(D)),
        }
    _A_in = _A_setup()

    def _B_setup():
        B, L, D, N = 1, 2048, 640, 192
        A_re = -(lambda _x: torch.exp(torch.as_tensor(_x)))((lambda *s: torch.randn(*s, dtype=torch.bfloat16) * 6.4)(D, N))
        A_im = torch.pi * (lambda *s: torch.randn(*s, dtype=torch.bfloat16) * 0.05)(D, N)
        B_re = (lambda *s: torch.randn(*s, dtype=torch.bfloat16) * 0.05)(D, N)
        B_im = (lambda *s: torch.randn(*s, dtype=torch.bfloat16) * 0.05)(D, N)
        C_re = (lambda *s: torch.randn(*s, dtype=torch.bfloat16) * 0.05)(D, N)
        C_im = (lambda *s: torch.randn(*s, dtype=torch.bfloat16) * 0.05)(D, N)
        log_dt = (lambda *s: torch.randn(*s, dtype=torch.bfloat16) * 0.05)(D) * 0.5 - 4.0
        Dskip = (lambda *s: torch.randn(*s, dtype=torch.bfloat16) * 0.05)(D)
        return {
            "u": _w((lambda *s: torch.randn(*s, dtype=torch.bfloat16) * 0.05)(B, L, D)),
            "A_re": _w(A_re),
            "A_im": _w(A_im),
            "B_re": _w(B_re),
            "B_im": _w(B_im),
            "C_re": _w(C_re),
            "C_im": _w(C_im),
            "log_dt": _w(log_dt),
            "Dskip": _w(Dskip),
        }
    _B_in = _B_setup()

    return {
        "A_u": _A_in["u"],
        "A_log_A_real": _A_in["log_A_real"],
        "A_A_imag": _A_in["A_imag"],
        "A_C_real": _A_in["C_real"],
        "A_C_imag": _A_in["C_imag"],
        "A_log_dt": _A_in["log_dt"],
        "A_D_skip": _A_in["D_skip"],
        "B_u": _B_in["u"],
        "B_A_re": _B_in["A_re"],
        "B_A_im": _B_in["A_im"],
        "B_B_re": _B_in["B_re"],
        "B_B_im": _B_in["B_im"],
        "B_C_re": _B_in["C_re"],
        "B_C_im": _B_in["C_im"],
        "B_log_dt": _B_in["log_dt"],
        "B_Dskip": _B_in["Dskip"],
    }

def reference(A_u, A_log_A_real, A_A_imag, A_C_real, A_C_imag, A_log_dt, A_D_skip, B_u, B_A_re, B_A_im, B_B_re, B_B_im, B_C_re, B_C_im, B_log_dt, B_Dskip):
    def _A_ref(u, log_A_real, A_imag, C_real, C_imag, log_dt, D_skip):
        L = u.shape[1]
        dt = torch.exp(log_dt)
        A = -torch.exp(log_A_real) + 1j * A_imag
        C = (C_real + 1j * C_imag) * dt[:, None]
        pos = (lambda x, dt: x.to(dt))(torch.arange(L), log_dt.dtype)
        P = torch.exp((A * dt[:, None])[:, :, None] * pos[None, None, :])
        K = 2.0 * torch.einsum("dn,dnl->dl", C, P).real
        L2 = 2 * L
        u_t = (lambda x, *d: x.permute(*d))(u, 0, 2, 1)
        Kf = (lambda x, *a, **k: torch.fft.rfft(x.float(), *a, **k))(K, L2)
        Uf = (lambda x, *a, **k: torch.fft.rfft(x.float(), *a, **k))(u_t, L2)
        y = (lambda x, *a, **k: torch.fft.irfft(x, *a, **k).to(torch.bfloat16))(Uf * Kf[None, :, :], L2)[:, :, :L]
        y = (lambda x, *d: x.permute(*d))(y, 0, 2, 1)
        return y + u * D_skip[None, None, :]

    def _B_ref(u, A_re, A_im, B_re, B_im, C_re, C_im, log_dt, Dskip):
        Bsz, L, D = u.shape
        dt = torch.exp(log_dt)[:, None]
        A = A_re + 1j * A_im
        Bc = B_re + 1j * B_im
        Cc = C_re + 1j * C_im
        logdA = dt * A
        dB = dt * Bc
        l = (lambda x, dt: x.to(dt))(torch.arange(L), A_re.dtype)
        P = torch.exp(logdA[:, :, None] * l[None, None, :])
        K = torch.einsum("dn,dnl,dn->dl", Cc, P, dB).real
        L2 = 2 * L
        Kp = _pad(K, ((0, 0), (0, L)))
        up = (lambda x, *d: x.permute(*d))(u, 0, 2, 1)
        up = _pad(up, ((0, 0), (0, 0), (0, L)))
        Kf = (lambda x, axes=(-2,-1): torch.fft.rfft2(x.float(), dim=axes))(Kp[:, None, :], axes=(-2, -1))
        Uf = (lambda x, axes=(-2,-1): torch.fft.rfft2(x.float(), dim=axes))(up[:, :, None, :], axes=(-2, -1))
        Yf = Uf * Kf[None, :, :, :]
        y = (lambda x, s, axes=(-2,-1): torch.fft.irfft2(x, s=s, dim=axes).to(torch.bfloat16))(Yf, (1, L2), axes=(-2, -1))[:, :, 0, :L]
        y = (lambda x, *d: x.permute(*d))(y, 0, 2, 1) + u * Dskip[None, None, :]
        return y

    a = _A_ref(A_u, A_log_A_real, A_A_imag, A_C_real, A_C_imag, A_log_dt, A_D_skip)
    b = _B_ref(B_u, B_A_re, B_A_im, B_B_re, B_B_im, B_C_re, B_C_im, B_log_dt, B_Dskip)
    return torch.concatenate([a, b], axis=-1)
```

```python
import sys, struct
NAME = "concat_heads__ssm_conv_s4d__ssm_conv_s4__prompt_kernel"
STAMP = "--stamp" in sys.argv
OUT = [a for a in sys.argv[1:] if not a.startswith("--")][0]

def f2u(x): return struct.unpack("<I", struct.pack("<f", x))[0]
LOG2E = 1.4426950408889634
INV2PI = 0.15915494309189535

class Emit:
    def __init__(self):
        self.o = []
        self.n = 0
        self.mf = {}
        self.vw = {}
        self.tr = {}
        self.q = []
    def raw(self, s): self.o.append(s)
    def label(self, s): self.o.append(s + ":")
    def nop(self, k):
        while k > 0:
            m = min(k, 16)
            self.o.append("    s_nop %d" % (m - 1)); self.n += m; k -= m
    def need(self, regs, table, dist=None):
        pad = 0
        for r in regs:
            if r in table:
                e = table[r]
                idx, d = e if isinstance(e, tuple) else (e, dist)
                pad = max(pad, d - (self.n - idx - 1))
        if pad > 0: self.nop(pad)
    def i(self, s):
        self.o.append("    " + s); self.n += 1
    def valu(self, s, rd=(), wr=(), trans=False):
        self.need(list(rd) + list(wr), self.mf)
        if not trans: self.need(rd, self.tr, 1)
        self.i(s)
        for r in wr:
            self.vw[r] = self.n - 1
            self.mf.pop(r, None)
            self.tr.pop(r, None)
            if trans: self.tr[r] = self.n - 1
    def mfma(self, shape, d, a, b, c=None):
        nd = 4 if shape == 16 else 16
        op = "v_mfma_f32_16x16x32_bf16" if shape == 16 else "v_mfma_f32_32x32x16_bf16"
        ra = list(range(a, a + 4)); rb = list(range(b, b + 4)); rd = list(range(d, d + nd))
        self.need(ra + rb + (rd if c is not None else []), self.vw, 2)
        self.need(ra + rb, self.mf)
        if c is None: self.need(rd, self.mf)
        cs = "0" if c is None else "v[%d:%d]" % (c, c + nd - 1)
        self.i("%s v[%d:%d], v[%d:%d], v[%d:%d], %s" % (op, d, d + nd - 1, a, a + 3, b, b + 3, cs))
        for r in rd: self.mf[r] = (self.n - 1, 8 if shape == 16 else 12)
    def ds(self, s, tag=None, rd=(), wr=()):
        self.need(list(rd) + list(wr), self.mf)
        self.need(rd, self.tr, 1)
        self.i(s); self.q.append(tag)
    def wait(self, tag):
        if tag not in self.q: return
        idx = len(self.q) - 1 - self.q[::-1].index(tag)
        n = len(self.q) - 1 - idx
        self.i("s_waitcnt lgkmcnt(%d)" % min(n, 15))
        self.q = self.q[idx + 1:]
    def waitall(self):
        self.i("s_waitcnt lgkmcnt(0)"); self.q = []
    def stamp(self, k):
        if STAMP:
            self.i("s_memtime s[%d:%d]" % (60 + 2 * k, 61 + 2 * k))
            self.waitall()

e = Emit()
def R(a, n): return list(range(a, a + n))
def vr(a, n): return "v[%d:%d]" % (a, a + n - 1)

NCH = 8
USZ = 4576
UBASE = 0
YS = 4096 + 64
YBASE = UBASE + NCH * USZ
SW = 8704
SBASE = YBASE + NCH * YS
LDS = SBASE + 8 * SW
RE = 272; RO = 2384

vTid, vLane, vLo, vKg = 0, 1, 2, 3
vWA = 4
vRB, vRA = 12, 13
vUrd, vYw = 14, 15
vU = 16
vBox9, vBox7 = 32, 36
vAad = 40
vKdA, vTrA, vOutA, vUw, vKx = 43, 44, 45, 46, 47
vRaw = 48
vP = 64
vD = 76; vKdW = 77
vZ1, vZ8, vZ256 = 82, 84, 86
vT = 88
vCh = 96
vPk = 128
vVF = 144; vWF = 176; vKacc = 208
vAF = 48; vAcc = 180; vBR = 212; NBR = 6
vF = 16; vKdF = 236; vFT = 4
vYp = 12
vSt = 252

hdr = open("concat_heads__ssm_conv_s4d__ssm_conv_s4__prompt.s.ref").read().split("; @launch")[0]
e.raw(hdr.rstrip("\n"))
e.raw("; @launch grid=(160,1,1) block=(512,1,1) lds=%d" % LDS)
e.raw('.amdgcn_target "amdgcn-amd-amdhsa--gfx950"')
e.raw(".text\n.globl %s\n.p2align 8\n.type %s,@function\n%s:" % (NAME, NAME, NAME))

e.i("s_cmp_ge_u32 s2, 160")
e.i("s_cbranch_scc1 L_end")
if STAMP: e.i("s_memtime s[60:61]")
e.i("s_and_b32 s4, s2, 7")
e.i("s_mul_i32 s4, s4, 20")
e.i("s_lshr_b32 s7, s2, 3")
e.i("s_add_u32 s4, s4, s7")
e.i("s_load_dwordx2 s[8:9], s[0:1], 128")
if STAMP: e.i("s_load_dwordx2 s[10:11], s[0:1], 144")
e.i("s_cmp_ge_u32 s4, 80")
e.i("s_cselect_b32 s6, 56, 0")
e.i("s_cselect_b32 s5, 80, 0")
e.i("s_load_dwordx16 s[16:31], s[0:1], s6")
e.i("s_load_dwordx2 s[32:33], s[0:1], 120")
e.i("s_sub_u32 s5, s4, s5")
e.valu("v_lshrrev_b32 v%d, 6, v0" % vT, wr=[vT])
e.valu("v_and_b32 v%d, 63, v0" % vLane, wr=[vLane])
e.i("v_readfirstlane_b32 s3, v%d" % vT)
e.valu("v_and_b32 v%d, 15, v%d" % (vLo, vLane), wr=[vLo])
e.valu("v_lshrrev_b32 v%d, 4, v%d" % (vKg, vLane), wr=[vKg])
e.i("s_lshl_b32 s12, s5, 3")
e.i("s_add_u32 s12, s12, s3")
e.i("s_mul_i32 s13, s12, 384")
e.i("s_lshl_b32 s14, s12, 1")
e.valu("v_lshl_add_u32 v%d, v%d, 2, s13" % (vT, vLane), wr=[vT])
e.valu("v_lshl_add_u32 v%d, v%d, 1, s13" % (vT + 1, vLane), wr=[vT + 1])
e.valu("v_mov_b32 v%d, s14" % (vT + 2), wr=[vT + 2])
e.i("s_mul_i32 s15, s7, 25")
e.valu("v_add_u32 v%d, s15, v0" % (vT + 3), wr=[vT + 3])
e.valu("v_and_b32 v%d, 511, v%d" % (vT + 3, vT + 3), wr=[vT + 3])
e.valu("v_lshlrev_b32 v%d, 3, v%d" % (vUw, vT + 3), wr=[vUw])
e.valu("v_mul_u32_u24 v%d, 5120, v%d" % (vT + 3, vT + 3), wr=[vT + 3])
e.i("s_lshl_b32 s15, s5, 4")
e.valu("v_add_u32 v%d, s15, v%d" % (vT + 3, vT + 3), wr=[vT + 3])
for k in range(6): e.valu("v_mov_b32 v%d, 0" % (vRaw + 2 * k + 1), wr=[vRaw + 2 * k + 1])
e.i("s_waitcnt lgkmcnt(0)")
e.i("s_cmp_lg_u32 s6, 0")
e.i("s_cbranch_scc1 L_ldB")
def ldparam(k, sp):
    e.i("global_load_dword v%d, v%d, s[%d:%d]" % (vRaw + 2 * k, vT, sp, sp + 1))
    e.i("global_load_short_d16_hi v%d, v%d, s[%d:%d] offset:256" % (vRaw + 2 * k + 1, vT + 1, sp, sp + 1))
e.i("global_load_ushort v%d, v%d, s[26:27]" % (vRaw + 12, vT + 2))
for k, sp in enumerate((18, 20, 22, 24)): ldparam(k, sp)
e.i("global_load_ushort v%d, v%d, s[28:29]" % (vRaw + 13, vT + 2))
e.i("s_branch L_ldU")
e.label("L_ldB")
e.i("global_load_ushort v%d, v%d, s[30:31]" % (vRaw + 12, vT + 2))
for k, sp in enumerate((18, 20, 26, 28, 22, 24)): ldparam(k, sp)
e.i("global_load_ushort v%d, v%d, s[32:33]" % (vRaw + 13, vT + 2))
e.label("L_ldU")
for i in range(4):
    e.i("global_load_dwordx4 %s, v%d, s[16:17] offset:%d nt" % (vr(vU + 4 * i, 4), vT + 3, 1280 * i))

e.i("s_mul_i32 s34, s3, %d" % SW)
e.i("s_add_u32 s34, s34, %d" % SBASE)
e.valu("v_lshl_add_u32 v%d, v%d, 2, s34" % (vWA, vLane), wr=[vWA])
for k in range(1, 8): e.valu("v_add_u32 v%d, %d, v%d" % (vWA + k, 1088 * k, vWA), wr=[vWA + k])
e.valu("v_and_b32 v%d, 31, v%d" % (vT, vLane), wr=[vT])
e.valu("v_lshrrev_b32 v%d, 5, v%d" % (vT + 1, vLane), wr=[vT + 1])
e.valu("v_lshl_add_u32 v%d, v%d, 4, s34" % (vT + 2, vT + 1), wr=[vT + 2])
e.valu("v_mul_u32_u24 v%d, 272, v%d" % (vRB, vT), wr=[vRB])
e.valu("v_add_u32 v%d, v%d, v%d" % (vRB, vRB, vT + 2), wr=[vRB])
e.valu("v_mov_b32 v%d, v%d" % (vT + 3, vT), wr=[vT + 3])
for a, b in ((5, 4), (12, 7), (13, 7), (20, 15)):
    e.i("v_cmp_ne_u32 vcc, %d, v%d" % (a, vT))
    e.nop(2)
    e.valu("v_cndmask_b32 v%d, %d, v%d, vcc" % (vT + 3, b, vT + 3), wr=[vT + 3])
e.valu("v_mul_u32_u24 v%d, 272, v%d" % (vRA, vT + 3), wr=[vRA])
e.valu("v_add_u32 v%d, v%d, v%d" % (vRA, vRA, vT + 2), wr=[vRA])
e.valu("v_lshlrev_b32 v%d, 7, v%d" % (vT + 3, vT + 1), wr=[vT + 3])
e.valu("v_lshl_add_u32 v%d, v%d, 1, v%d" % (vT + 3, vT, vT + 3), wr=[vT + 3])
e.i("s_add_u32 s35, s34, 190")
e.valu("v_sub_u32 v%d, s35, v%d" % (vKdW, vT + 3), wr=[vKdW])
e.i("s_add_u32 s35, s34, 1328")
e.valu("v_lshlrev_b32 v%d, 4, v%d" % (vT + 3, vLane), wr=[vT + 3])
e.valu("v_sub_u32 v%d, s35, v%d" % (vKx, vT + 3), wr=[vKx])
e.valu("v_lshlrev_b32 v%d, 4, v%d" % (vT + 3, vKg), wr=[vT + 3])
e.valu("v_lshlrev_b32 v%d, 1, v%d" % (vT + 4, vLo), wr=[vT + 4])
e.valu("v_sub_u32 v%d, v%d, v%d" % (vT + 5, vT + 3, vT + 4), wr=[vT + 5])
e.valu("v_and_b32 v%d, 1, v%d" % (vT + 6, vLo), wr=[vT + 6])
e.valu("v_mul_u32_u24 v%d, %d, v%d" % (vT + 6, RO - RE + 2, vT + 6), wr=[vT + 6])
e.valu("v_sub_u32 v%d, v%d, v%d" % (vT + 5, vT + 5, vT + 6), wr=[vT + 5])
e.i("s_add_u32 s35, s34, %d" % (RE + 30 + RO - RE + 2))
e.valu("v_add_u32 v%d, s35, v%d" % (vAad, vT + 5), wr=[vAad])
e.valu("v_add_u32 v%d, 1024, v%d" % (vAad + 1, vAad), wr=[vAad + 1])
e.valu("v_add_u32 v%d, 2048, v%d" % (vAad + 2, vAad), wr=[vAad + 2])
e.valu("v_lshlrev_b32 v%d, 2, v%d" % (vT + 5, vLo), wr=[vT + 5])
e.valu("v_sub_u32 v%d, v%d, v%d" % (vT + 5, vT + 3, vT + 5), wr=[vT + 5])
e.i("s_add_u32 s35, s34, 60")
e.valu("v_add_u32 v%d, s35, v%d" % (vKdA, vT + 5), wr=[vKdA])
e.i("s_mul_i32 s35, s3, %d" % USZ)
e.valu("v_lshl_add_u32 v%d, v%d, 5, v%d" % (vT + 5, vLo, vT + 3), wr=[vT + 5])
e.valu("v_add_u32 v%d, s35, v%d" % (vUrd, vT + 5), wr=[vUrd])
e.valu("v_lshl_add_u32 v%d, v%d, 3, s35" % (vT + 5, vLane), wr=[vT + 5])
e.valu("v_mov_b32 v%d, 0" % (vKacc), wr=[vKacc])
e.valu("v_mov_b32 v%d, 0" % (vKacc + 1), wr=[vKacc + 1])
e.i("s_mov_b32 exec_hi, 0x0fffffff")
e.ds("ds_write_b64 v%d, %s" % (vT + 5, vr(vKacc, 2)))
e.i("s_mov_b32 exec_hi, -1")
for k in range(2, 16): e.valu("v_mov_b32 v%d, 0" % (vKacc + k), wr=[vKacc + k])
e.i("s_mul_i32 s35, s3, %d" % YS)
e.i("s_add_u32 s35, s35, %d" % YBASE)
e.valu("v_lshlrev_b32 v%d, 5, v%d" % (vT + 5, vLo), wr=[vT + 5])
e.valu("v_lshl_add_u32 v%d, v%d, 3, v%d" % (vT + 5, vKg, vT + 5), wr=[vT + 5])
e.valu("v_add_u32 v%d, s35, v%d" % (vYw, vT + 5), wr=[vYw])
e.valu("v_lshrrev_b32 v%d, 2, v%d" % (vT + 5, vLo), wr=[vT + 5])
e.valu("v_mul_u32_u24 v%d, %d, v%d" % (vT + 5, YS, vT + 5), wr=[vT + 5])
e.valu("v_and_b32 v%d, 3, v%d" % (vT + 6, vLo), wr=[vT + 6])
e.valu("v_lshl_add_u32 v%d, v%d, 3, v%d" % (vT + 5, vT + 6, vT + 5), wr=[vT + 5])
e.valu("v_and_b32 v%d, 1, v%d" % (vT + 6, vKg), wr=[vT + 6])
e.valu("v_lshl_add_u32 v%d, v%d, 5, v%d" % (vT + 5, vT + 6, vT + 5), wr=[vT + 5])
e.i("s_lshl_b32 s35, s3, 6")
e.i("s_add_u32 s35, s35, %d" % YBASE)
e.valu("v_add_u32 v%d, s35, v%d" % (vTrA, vT + 5), wr=[vTrA])
e.i("s_mul_i32 s35, s3, %d" % (32 * 2560))
e.i("s_lshl_b32 s36, s4, 4")
e.i("s_add_u32 s35, s35, s36")
e.valu("v_mul_u32_u24 v%d, 2560, v%d" % (vT + 5, vT), wr=[vT + 5])
e.valu("v_add_u32 v%d, s35, v%d" % (vOutA, vT + 5), wr=[vOutA])
e.i("s_mov_b32 s37, 0xffff")
e.i("s_mov_b32 s38, 0x05040100")
e.i("s_mov_b32 s39, 0x07060302")
e.valu("v_lshlrev_b32 v%d, 3, v%d" % (vT + 4, vKg), wr=[vT + 4])
for (vb, msk) in ((vBox9, 0x1ff << 4), (vBox7, 0x7f << 5)):
    e.valu("v_mov_b32 v%d, 0x%x" % (vT + 5, msk), wr=[vT + 5])
    e.valu("v_lshlrev_b32 v%d, v%d, v%d" % (vT + 5, vLo, vT + 5), wr=[vT + 5])
    e.valu("v_lshrrev_b32 v%d, v%d, v%d" % (vT + 5, vT + 4, vT + 5), wr=[vT + 5])
    for d in range(4):
        e.valu("v_bfe_i32 v%d, v%d, %d, 1" % (vT + 6, vT + 5, 2 * d), wr=[vT + 6])
        e.valu("v_bfe_i32 v%d, v%d, %d, 1" % (vT + 7, vT + 5, 2 * d + 1), wr=[vT + 7])
        e.valu("v_bfi_b32 v%d, s37, v%d, v%d" % (vb + d, vT + 6, vT + 7), wr=[vb + d])
        e.valu("v_and_b32 v%d, 0x3f803f80, v%d" % (vb + d, vb + d), wr=[vb + d])

e.i("s_waitcnt vmcnt(4)")
e.stamp(1)
vdt = vT; vdtl = vT + 1; vdtr = vT + 2
e.valu("v_lshlrev_b32 v%d, 16, v%d" % (vdt, vRaw + 12), wr=[vdt])
e.valu("v_mul_f32 v%d, 0x%x, v%d" % (vdt, f2u(LOG2E), vdt), wr=[vdt])
e.valu("v_exp_f32 v%d, v%d" % (vdt, vdt), wr=[vdt], trans=True)
e.valu("v_lshlrev_b32 v%d, 16, v%d" % (vD, vRaw + 13), wr=[vD])
e.valu("v_cvt_pk_bf16_f32 v%d, v%d, v%d" % (vdt, vdt, vdt), rd=[vdt], wr=[vdt])
e.valu("v_and_b32 v%d, 0xffff0000, v%d" % (vdt, vdt), wr=[vdt])
e.valu("v_mul_f32 v%d, 0x%x, v%d" % (vdtl, f2u(LOG2E), vdt), wr=[vdtl])
e.valu("v_mul_f32 v%d, 0x%x, v%d" % (vdtr, f2u(INV2PI), vdt), wr=[vdtr])
e.i("v_cmp_eq_u32 vcc, 0, v%d" % vLane)
def UP(k, u): return (vRaw + 2 * k + 1) if u == 2 else (vCh + 2 * k + u)
def unpack(k):
    e.valu("v_lshlrev_b32 v%d, 16, v%d" % (UP(k, 0), vRaw + 2 * k), wr=[UP(k, 0)])
    e.valu("v_and_b32 v%d, 0xffff0000, v%d" % (UP(k, 1), vRaw + 2 * k), wr=[UP(k, 1)])
for k in range(4): unpack(k)
e.valu("v_cndmask_b32 v%d, 0, v%d, vcc" % (vD, vD), wr=[vD])
for u in range(3):
    e.valu("v_mul_f32 v%d, v%d, v%d" % (vP + 4 * u + 1, UP(1, u), vdtr), wr=[vP + 4 * u + 1])
e.i("s_cmp_lg_u32 s6, 0")
e.i("s_cbranch_scc1 L_prepB")
e.valu("v_add_f32 v%d, v%d, v%d" % (vdt, vdt, vdt), wr=[vdt])
for u in range(3):
    e.valu("v_mul_f32 v%d, 0x%x, v%d" % (vT + 4 + u, f2u(LOG2E), UP(0, u)), wr=[vT + 4 + u])
for u in range(3):
    e.valu("v_exp_f32 v%d, v%d" % (vT + 4 + u, vT + 4 + u), wr=[vT + 4 + u], trans=True)
for u in range(3):
    e.valu("v_mul_f32 v%d, v%d, v%d" % (vP + 4 * u + 2, UP(2, u), vdt), wr=[vP + 4 * u + 2])
    e.valu("v_mul_f32 v%d, v%d, v%d" % (vP + 4 * u + 3, UP(3, u), vdt), wr=[vP + 4 * u + 3])
for u in range(3):
    e.valu("v_cvt_pk_bf16_f32 v%d, v%d, v%d" % (vT + 4 + u, vT + 4 + u, vT + 4 + u), rd=[vT + 4 + u], wr=[vT + 4 + u])
    e.valu("v_and_b32 v%d, 0xffff0000, v%d" % (vT + 4 + u, vT + 4 + u), wr=[vT + 4 + u])
    e.valu("v_mul_f32 v%d, -v%d, v%d" % (vP + 4 * u, vT + 4 + u, vdtl), wr=[vP + 4 * u])
e.i("s_branch L_prepDone")
e.label("L_prepB")
unpack(4); unpack(5)
for u in range(3):
    e.valu("v_mul_f32 v%d, v%d, v%d" % (vP + 4 * u, UP(0, u), vdtl), wr=[vP + 4 * u])
    e.valu("v_mul_f32 v%d, v%d, v%d" % (UP(4, u), UP(4, u), vdt), wr=[UP(4, u)])
    e.valu("v_mul_f32 v%d, v%d, v%d" % (UP(5, u), UP(5, u), vdt), wr=[UP(5, u)])
    e.valu("v_mul_f32 v%d, v%d, v%d" % (vP + 4 * u + 2, UP(2, u), UP(4, u)), wr=[vP + 4 * u + 2])
    e.valu("v_mul_f32 v%d, v%d, v%d" % (vP + 4 * u + 3, UP(2, u), UP(5, u)), wr=[vP + 4 * u + 3])
    e.valu("v_fma_f32 v%d, -v%d, v%d, v%d" % (vP + 4 * u + 2, UP(3, u), UP(5, u), vP + 4 * u + 2), wr=[vP + 4 * u + 2])
    e.valu("v_fma_f32 v%d, v%d, v%d, v%d" % (vP + 4 * u + 3, UP(3, u), UP(4, u), vP + 4 * u + 3), wr=[vP + 4 * u + 3])
e.label("L_prepDone")

def anchor_ops(pa):
    ops = []
    T = vT
    for (k, (P, vz)) in enumerate(((8, vZ8), (1, vZ1), (256, vZ256))):
        te, tf = T + 2 * k, T + 2 * k + 1
        if P == 1:
            ops.append(lambda te=te: e.valu("v_exp_f32 v%d, v%d" % (te, pa), wr=[te], trans=True))
            ops.append(lambda tf=tf: e.valu("v_fract_f32 v%d, v%d" % (tf, pa + 1), wr=[tf]))
        else:
            ops.append(lambda te=te, P=P: e.valu("v_mul_f32 v%d, 0x%x, v%d" % (te, f2u(float(P)), pa), wr=[te]))
            ops.append(lambda tf=tf, P=P: e.valu("v_mul_f32 v%d, 0x%x, v%d" % (tf, f2u(float(P)), pa + 1), wr=[tf]))
            ops.append(lambda te=te: e.valu("v_exp_f32 v%d, v%d" % (te, te), wr=[te], trans=True))
            ops.append(lambda tf=tf: e.valu("v_fract_f32 v%d, v%d" % (tf, tf), wr=[tf]))
        ops.append(lambda tf=tf, vz=vz: e.valu("v_cos_f32 v%d, v%d" % (vz, tf), wr=[vz], trans=True))
        ops.append(lambda tf=tf, vz=vz: e.valu("v_sin_f32 v%d, v%d" % (vz + 1, tf), wr=[vz + 1], trans=True))
        ops.append(lambda te=te, vz=vz: e.valu("v_mul_f32 v%d, v%d, v%d" % (vz, vz, te), rd=[vz, te], wr=[vz]))
        ops.append(lambda te=te, vz=vz: e.valu("v_mul_f32 v%d, v%d, v%d" % (vz + 1, vz + 1, te), rd=[vz + 1, te], wr=[vz + 1]))
    return ops
def cmul(d, x, m):
    e.valu("v_pk_mul_f32 %s, %s, %s op_sel_hi:[1,0]" % (vr(d, 2), vr(x, 2), vr(m, 2)), wr=[d, d + 1])
    e.valu("v_pk_fma_f32 %s, %s, %s, %s op_sel:[1,1,0] op_sel_hi:[0,1,1] neg_lo:[1,0,0]" % (vr(d, 2), vr(x, 2), vr(m, 2), vr(d, 2)), wr=[d, d + 1])
def wr2(r0, p0, r1, p1):
    k = r0 // 4; assert r1 // 4 == k
    e.ds("ds_write2_b32 v%d, v%d, v%d offset0:%d offset1:%d" % (vWA + k, p0, p1, 68 * (r0 % 4), 68 * (r1 % 4)))
def wr1(r0, p0):
    e.ds("ds_write_b32 v%d, v%d offset:%d" % (vWA + r0 // 4, p0, 272 * (r0 % 4)))

for op in anchor_ops(vP): op()
e.i("s_mov_b32 s40, 3")
e.label("L_kgen")
pk = lambda k: vPk + (k % 16)
e.valu("v_mov_b32 v%d, 0x3f80" % pk(0), wr=[pk(0)])
e.valu("v_cvt_pk_bf16_f32 v%d, v%d, v%d" % (pk(1), vZ8, vZ8 + 1), wr=[pk(1)])
wr2(0, pk(0), 1, pk(1))
prev = vZ8
for c in range(2, 32):
    cur = vCh + 2 * (c % 2)
    cmul(cur, prev, vZ8)
    e.valu("v_cvt_pk_bf16_f32 v%d, v%d, v%d" % (pk(c), cur, cur + 1), wr=[pk(c)])
    if c % 2 == 1: wr2(c - 1, pk(c - 1), c, pk(c))
    prev = cur
for s in range(8):
    e.ds("ds_read_b128 %s, v%d offset:%d" % (vr(vVF + 4 * s, 4), vRB, 32 * s), tag="VF", wr=R(vVF + 4 * s, 4))
def mrow(h, r): return 8 * (r >> 2) + 4 * h + (r & 3)
SROW = {}
for r in range(9): SROW[r] = mrow(0, r)
for r, x in ((0, 0), (2, 2), (3, 4), (6, 6), (7, 8)): SROW[256 + x] = mrow(1, r)
for r, x in enumerate((0, 4, 8)): SROW[512 + x] = mrow(0, 9 + r); SROW[768 + x] = mrow(1, 9 + r)
SROW[1032] = mrow(0, 12); SROW[1288] = mrow(0, 13); SROW[1544] = mrow(1, 12); SROW[1800] = mrow(1, 13)
wreg = {0: vP + 2}
seq = [(p, p - 1, vZ1) for p in range(1, 9)] + [(256 + x, x, vZ256) for x in (0, 2, 4, 6, 8)] + \
      [(512 + x, 256 + x, vZ256) for x in (0, 4, 8)] + [(768 + x, 512 + x, vZ256) for x in (0, 4, 8)] + \
      [(1032, 776, vZ256), (1288, 1032, vZ256), (1544, 1288, vZ256), (1800, 1544, vZ256)]
pend = {}
cnt = [0]
remaining = {}
for P in SROW: remaining[SROW[P] // 4] = remaining.get(SROW[P] // 4, 0) + 1
def emitW(P):
    p = pk(cnt[0]); cnt[0] += 1
    e.valu("v_cvt_pk_bf16_f32 v%d, v%d, -v%d" % (p, wreg[P], wreg[P] + 1), wr=[p])
    row = SROW[P]; w = row // 4
    remaining[w] -= 1
    if w in pend:
        r0, p0 = pend.pop(w); wr2(r0, p0, row, p)
    elif remaining[w] == 0:
        wr1(row, p)
    else:
        pend[w] = (row, p)
emitW(0)
for k, (P, src, m) in enumerate(seq):
    wreg[P] = vCh + 2 * (k % 16)
    cmul(wreg[P], wreg[src], m)
    emitW(P)
assert not pend
for s in range(8):
    e.ds("ds_read_b128 %s, v%d offset:%d" % (vr(vWF + 4 * s, 4), vRA, 32 * s), tag="WF%d" % s, wr=R(vWF + 4 * s, 4))
for k in range(8): e.valu("v_mov_b32 v%d, v%d" % (vP + k, vP + 4 + k), wr=[vP + k])
aops = anchor_ops(vP)
per = (len(aops) + 7) // 8
for s in range(8):
    e.wait("WF%d" % s)
    e.mfma(32, vKacc, vWF + 4 * s, vVF + 4 * s, vKacc)
    for op in aops[s * per:(s + 1) * per]: op()
e.i("s_sub_u32 s40, s40, 1")
e.i("s_cmp_lg_u32 s40, 0")
e.i("s_cbranch_scc1 L_kgen")
e.stamp(2)

e.i("s_waitcnt vmcnt(0)")
e.stamp(3)
for d in range(4):
    for half, sel in ((0, "s38"), (1, "s39")):
        ch = 2 * d + half
        t = vPk + 2 * ch
        e.valu("v_perm_b32 v%d, v%d, v%d, %s" % (t, vU + 4 + d, vU + d, sel), wr=[t])
        e.valu("v_perm_b32 v%d, v%d, v%d, %s" % (t + 1, vU + 12 + d, vU + 8 + d, sel), wr=[t + 1])
        e.ds("ds_write_b64 v%d, %s offset:%d" % (vUw, vr(t, 2), UBASE + ch * USZ + 480))

K = vKacc
X = vCh
e.valu("v_lshrrev_b32 v%d, 2, v%d" % (vT, vLane), wr=[vT])
e.valu("v_mul_u32_u24 v%d, 2112, v%d" % (vT, vT), wr=[vT])
e.valu("v_and_b32 v%d, 3, v%d" % (vT + 1, vLane), wr=[vT + 1])
e.valu("v_lshl_add_u32 v%d, v%d, 4, v%d" % (vT, vT + 1, vT), wr=[vT])
e.valu("v_add_u32 v%d, s34, v%d" % (vT, vT), wr=[vT])
for k in range(4): e.valu("v_mov_b32 v%d, 0" % (X + 16 + k), wr=[X + 16 + k])
e.i("s_mov_b64 exec, 0xfff")
e.ds("ds_write_b128 v%d, %s offset:256" % (vT, vr(X + 16, 4)))
e.i("s_mov_b64 exec, -1")
e.valu("v_add_f32 v%d, v%d, v%d" % (K, K, vD), rd=[K], wr=[K])
def cv(d, a, b): e.valu("v_cvt_pk_bf16_f32 v%d, v%d, v%d" % (d, a, b), rd=[a, b], wr=[d])
for k in range(4): cv(X + k, K + 7 - 2 * k, K + 6 - 2 * k)
e.ds("ds_write_b128 v%d, %s offset:%d" % (vKx, vr(X, 4), 16 + 1024))
for k in range(4): cv(X + 4 + k, K + 8 - 2 * k, K + 7 - 2 * k)
e.ds("ds_write_b128 v%d, %s offset:%d" % (vKx, vr(X + 4, 4), 16 + 1024 + 2112))
k0, k4, k8 = K + 9, K + 10, K + 11
for k, (a, b) in enumerate(((k8, k8), (k4, k4), (k4, k0), (k0, k0))): cv(X + 8 + k, a, b)
e.ds("ds_write_b128 v%d, %s offset:%d" % (vKx, vr(X + 8, 4), 16))
for k, (a, b) in enumerate(((k8, k8), (k8, k4), (k4, k4), (k0, k0))): cv(X + 12 + k, a, b)
e.ds("ds_write_b128 v%d, %s offset:%d" % (vKx, vr(X + 12, 4), 16 + 2112))
cv(X + 24, K + 12, K + 13)
e.ds("ds_write_b16 v%d, v%d offset:64" % (vKdW, X + 24))
e.ds("ds_write_b16_d16_hi v%d, v%d" % (vKdW, X + 24))
e.valu("v_mov_b32 v%d, v%d" % (X + 18, X + 8), wr=[X + 18])
e.valu("v_mov_b32 v%d, v%d" % (X + 19, X + 8), wr=[X + 19])
e.valu("v_mov_b32 v%d, 0" % (X + 20), wr=[X + 20])
e.valu("v_and_b32 v%d, 0xffff0000, v%d" % (X + 21, X + 8), wr=[X + 21])
e.valu("v_mov_b32 v%d, v%d" % (X + 22, X + 8), wr=[X + 22])
e.valu("v_mov_b32 v%d, v%d" % (X + 23, X + 8), wr=[X + 23])
e.i("s_mov_b32 exec_lo, 0")
e.i("s_mov_b32 exec_hi, 0x80000000")
e.ds("ds_write_b128 v%d, %s" % (vKx, vr(X + 20, 4)))
e.ds("ds_write_b128 v%d, %s offset:2112" % (vKx, vr(X + 16, 4)))
e.i("s_mov_b64 exec, 1")
e.ds("ds_write_b16_d16_hi v%d, v%d offset:%d" % (vKx, X + 3, 16 + 1024 + 2112 + 16))
e.i("s_mov_b64 exec, -1")
e.waitall()
for sg in range(33):
    idx = 32 - sg
    a = vAad + (idx >> 4); o = 16 * (idx & 15)
    e.ds("ds_read2_b32 %s, v%d offset0:%d offset1:%d" % (vr(vAF + 4 * sg, 2), a, o, o + 1), wr=R(vAF + 4 * sg, 2))
    e.ds("ds_read2_b32 %s, v%d offset0:%d offset1:%d" % (vr(vAF + 4 * sg + 2, 2), a, o + 2, o + 3), wr=R(vAF + 4 * sg + 2, 2))
for q in range(4, 8):
    o = 16 * (7 - q); d = vKdF + 4 * (q - 4)
    e.ds("ds_read2_b32 %s, v%d offset0:%d offset1:%d" % (vr(d, 2), vKdA, o, o + 1))
    e.ds("ds_read2_b32 %s, v%d offset0:%d offset1:%d" % (vr(d + 2, 2), vKdA, o + 2, o + 3))
e.i("s_barrier")
e.stamp(4)

PASSES = [[0, 1, 2, 3, 4], [5, 6], [7]]
steps = []
for ps in PASSES:
    lo = max(-7, 8 * ps[0] - 32); hi = 8 * ps[-1]
    for nu in range(lo, hi + 1):
        acts = [("c", n, 8 * n - nu) for n in ps if 0 <= 8 * n - nu <= 32]
        if ps is PASSES[0] and nu in (0, 8, 16, 24):
            steps.append((64 * (nu + 7) - 16, [("fe", nu // 8)]))
            acts = [("fo", nu // 8)] + acts
        if acts: steps.append((64 * (nu + 7), acts))
started = set()
deferred = []
DEPTH = NBR - 1
def issue_read(k):
    if k < len(steps):
        r = vBR + 4 * (k % NBR)
        e.ds("ds_read_b128 %s, v%d offset:%d" % (vr(r, 4), vUrd, steps[k][0]), tag="B%d" % k)
def do_cvtF(b):
    for r in range(4): cv(vF + 4 * b + r, vFT + r, vFT + 4 + r)
def do_ywrite(n):
    a = vAcc + 4 * n
    cv(vYp, a, a + 1); cv(vYp + 1, a + 2, a + 3)
    e.ds("ds_write_b64 v%d, %s offset:%d" % (vYw, vr(vYp, 2), 512 * n), tag="Y%d" % n)
def do_bar(n):
    e.wait("Y%d" % n)
    e.i("s_barrier")
    e.ds("ds_read_b64_tr_b16 %s, v%d offset:%d" % (vr(vSt, 2), vTrA, 512 * n), tag="T%da" % n)
    e.ds("ds_read_b64_tr_b16 %s, v%d offset:%d" % (vr(vSt + 2, 2), vTrA, 512 * n + 4 * YS), tag="T%d" % n)
def do_store(n):
    e.wait("T%d" % n)
    e.i("s_mov_b32 exec_hi, 0")
    e.i("global_store_dwordx4 v%d, %s, s[8:9]" % (vOutA, vr(vSt, 4)))
    e.i("s_mov_b32 exec_hi, -1")
    e.valu("v_add_u32 v%d, %d, v%d" % (vOutA, 256 * 2560, vOutA), wr=[vOutA])
for k in range(DEPTH): issue_read(k)
for k, (off, acts) in enumerate(steps):
    issue_read(k + DEPTH)
    e.wait("B%d" % k)
    b = vBR + 4 * (k % NBR)
    for a in acts:
        if a[0] == "fe": e.mfma(16, vFT, b, vBox9)
        elif a[0] == "fo":
            e.mfma(16, vFT + 4, b, vBox7)
            deferred.append((k + 2, lambda bb=a[1]: do_cvtF(bb)))
        else:
            _, n, sg = a
            acc = vAcc + 4 * n
            e.mfma(16, acc, vAF + 4 * sg, b, acc if n in started else None)
            started.add(n)
            if sg == 8 and n >= 4:
                for fb in range(n - 3):
                    e.mfma(16, acc, vF + 4 * fb, vKdF + 4 * (n - fb - 4), acc)
            if sg == 0:
                deferred.append((k + 2, lambda nn=n: do_ywrite(nn)))
                deferred.append((k + 4, lambda nn=n: do_bar(nn)))
                deferred.append((k + 6, lambda nn=n: do_store(nn)))
    due = [d for d in deferred if d[0] <= k]
    deferred = [d for d in deferred if d[0] > k]
    for d in due: d[1]()
for d in sorted(deferred, key=lambda x: x[0]): d[1]()
e.stamp(5)
if STAMP:
    e.i("s_waitcnt vmcnt(0)")
    e.stamp(6)
    e.i("s_lshl_b32 s41, s2, 3")
    e.i("s_add_u32 s41, s41, s3")
    e.i("s_lshl_b32 s41, s41, 5")
    e.i("s_mov_b64 exec, 1")
    for k in range(1, 7):
        e.i("s_sub_u32 s42, s%d, s60" % (60 + 2 * k))
        e.i("v_mov_b32 v1, s41")
        e.i("v_mov_b32 v2, s42")
        e.i("global_store_dword v1, v2, s[10:11] offset:%d" % (4 * k))
        e.i("s_waitcnt vmcnt(0)")
e.label("L_end")
e.i("s_endpgm")
e.raw(""".section .rodata,"a"
.p2align 6
.amdhsa_kernel %s
  .amdhsa_next_free_vgpr 256
  .amdhsa_next_free_sgpr 102
  .amdhsa_accum_offset 256
  .amdhsa_group_segment_fixed_size 0
  .amdhsa_kernarg_size 152
  .amdhsa_user_sgpr_count 2
  .amdhsa_user_sgpr_kernarg_segment_ptr 1
  .amdhsa_system_sgpr_workgroup_id_x 1
.end_amdhsa_kernel""" % NAME)
open(OUT, "w").write("\n".join(e.o) + "\n")
print("wrote", OUT, "instrs", e.n, "lds", LDS, "steps", len(steps))
```

```python
import sys, struct
NAME = "concat_heads__ssm_conv_s4d__ssm_conv_s4__prompt_kernel"
STAMP = "--stamp" in sys.argv
OUT = [a for a in sys.argv[1:] if not a.startswith("--")][0]

def f2u(x): return struct.unpack("<I", struct.pack("<f", x))[0]
LOG2E = 1.4426950408889634
INV2PI = 0.15915494309189535

class Emit:
    def __init__(self):
        self.o = []
        self.n = 0
        self.mf = {}
        self.vw = {}
        self.tr = {}
        self.q = []
    def raw(self, s): self.o.append(s)
    def label(self, s): self.o.append(s + ":")
    def nop(self, k):
        while k > 0:
            m = min(k, 16)
            self.o.append("    s_nop %d" % (m - 1)); self.n += m; k -= m
    def need(self, regs, table, dist=None):
        pad = 0
        for r in regs:
            if r in table:
                e = table[r]
                idx, d = e if isinstance(e, tuple) else (e, dist)
                pad = max(pad, d - (self.n - idx - 1))
        if pad > 0: self.nop(pad)
    def i(self, s):
        self.o.append("    " + s); self.n += 1
    def valu(self, s, rd=(), wr=(), trans=False):
        self.need(list(rd) + list(wr), self.mf)
        if not trans: self.need(rd, self.tr, 1)
        self.i(s)
        for r in wr:
            self.vw[r] = self.n - 1
            self.mf.pop(r, None)
            self.tr.pop(r, None)
            if trans: self.tr[r] = self.n - 1
    def mfma(self, shape, d, a, b, c=None):
        nd = 4 if shape == 16 else 16
        op = "v_mfma_f32_16x16x32_bf16" if shape == 16 else "v_mfma_f32_32x32x16_bf16"
        ra = list(range(a, a + 4)); rb = list(range(b, b + 4)); rd = list(range(d, d + nd))
        self.need(ra + rb + (rd if c is not None else []), self.vw, 2)
        self.need(ra + rb, self.mf)
        if c is None: self.need(rd, self.mf)
        cs = "0" if c is None else "v[%d:%d]" % (c, c + nd - 1)
        self.i("%s v[%d:%d], v[%d:%d], v[%d:%d], %s" % (op, d, d + nd - 1, a, a + 3, b, b + 3, cs))
        for r in rd: self.mf[r] = (self.n - 1, 8 if shape == 16 else 12)
    def ds(self, s, tag=None, rd=(), wr=()):
        self.need(list(rd) + list(wr), self.mf)
        self.need(rd, self.tr, 1)
        self.i(s); self.q.append(tag)
    def wait(self, tag):
        if tag not in self.q: return
        idx = len(self.q) - 1 - self.q[::-1].index(tag)
        n = len(self.q) - 1 - idx
        self.i("s_waitcnt lgkmcnt(%d)" % min(n, 15))
        self.q = self.q[idx + 1:]
    def waitall(self):
        self.i("s_waitcnt lgkmcnt(0)"); self.q = []
    def stamp(self, k):
        if STAMP:
            self.i("s_memtime s[%d:%d]" % (60 + 2 * k, 61 + 2 * k))
            self.waitall()

e = Emit()
def R(a, n): return list(range(a, a + n))
def vr(a, n): return "v[%d:%d]" % (a, a + n - 1)

NCH = 8
USZ = 4576
SW = 8704
SBASE = 0
UBASE = SBASE + 8 * SW
YS = 4096 + 64
YBASE = UBASE + NCH * USZ
LDS = YBASE + NCH * YS
RE = 272; RO = 2384

vTid, vLane, vLo, vKg = 0, 1, 2, 3
vWA = 4
vRB, vRA = 12, 13
vUrd, vYw = 14, 15
vU = 16
vBox9, vBox7 = 32, 36
vAad = 40
vKdA, vTrA, vOutA, vUw, vKx = 43, 44, 45, 46, 47
vRaw = 48
vP = 64
vD = 76; vKdW = 77
vZ1, vZ8, vZ256 = 82, 84, 86
vT = 88
vCh = 96
vPk = 128
vVF = 144; vWF = 176; vKacc = 208
vAF = 48; vAcc = 180; vBR = 212; NBR = 6
vF = 16; vKdF = 236; vFT = 4
vYp = 12
vSt = 252

hdr = open("concat_heads__ssm_conv_s4d__ssm_conv_s4__prompt.s.ref").read().split("; @launch")[0]
e.raw(hdr.rstrip("\n"))
e.raw("; @launch grid=(160,1,1) block=(512,1,1) lds=%d" % LDS)
e.raw('.amdgcn_target "amdgcn-amd-amdhsa--gfx950"')
e.raw(".text\n.globl %s\n.p2align 8\n.type %s,@function\n%s:" % (NAME, NAME, NAME))

e.i("s_cmp_ge_u32 s2, 160")
e.i("s_cbranch_scc1 L_end")
if STAMP: e.i("s_memtime s[60:61]")
e.i("s_and_b32 s4, s2, 7")
e.i("s_mul_i32 s4, s4, 20")
e.i("s_lshr_b32 s7, s2, 3")
e.i("s_add_u32 s4, s4, s7")
e.i("s_load_dwordx2 s[8:9], s[0:1], 128")
if STAMP: e.i("s_load_dwordx2 s[10:11], s[0:1], 144")
e.i("s_cmp_ge_u32 s4, 80")
e.i("s_cselect_b32 s6, 56, 0")
e.i("s_cselect_b32 s5, 80, 0")
e.i("s_load_dwordx16 s[16:31], s[0:1], s6")
e.i("s_load_dwordx2 s[32:33], s[0:1], 120")
e.i("s_sub_u32 s5, s4, s5")
e.valu("v_lshrrev_b32 v%d, 6, v0" % vT, wr=[vT])
e.valu("v_and_b32 v%d, 63, v0" % vLane, wr=[vLane])
e.i("v_readfirstlane_b32 s3, v%d" % vT)
e.valu("v_and_b32 v%d, 15, v%d" % (vLo, vLane), wr=[vLo])
e.valu("v_lshrrev_b32 v%d, 4, v%d" % (vKg, vLane), wr=[vKg])
e.i("s_lshl_b32 s12, s5, 3")
e.i("s_add_u32 s12, s12, s3")
e.i("s_mul_i32 s13, s12, 384")
e.i("s_lshl_b32 s14, s12, 1")
e.valu("v_lshl_add_u32 v%d, v%d, 2, s13" % (vT, vLane), wr=[vT])
e.valu("v_lshl_add_u32 v%d, v%d, 1, s13" % (vT + 1, vLane), wr=[vT + 1])
e.valu("v_mov_b32 v%d, s14" % (vT + 2), wr=[vT + 2])
e.i("s_mul_i32 s15, s7, 25")
e.valu("v_add_u32 v%d, s15, v0" % (vT + 3), wr=[vT + 3])
e.valu("v_and_b32 v%d, 511, v%d" % (vT + 3, vT + 3), wr=[vT + 3])
e.valu("v_lshlrev_b32 v%d, 3, v%d" % (vUw, vT + 3), wr=[vUw])
e.valu("v_add_u32 v%d, %d, v%d" % (vUw, UBASE, vUw), wr=[vUw])
e.valu("v_mul_u32_u24 v%d, 5120, v%d" % (vT + 3, vT + 3), wr=[vT + 3])
e.i("s_lshl_b32 s15, s5, 4")
e.valu("v_add_u32 v%d, s15, v%d" % (vWA, vT + 3), wr=[vWA])
for k in range(6): e.valu("v_mov_b32 v%d, 0" % (vRaw + 2 * k + 1), wr=[vRaw + 2 * k + 1])
e.i("s_waitcnt lgkmcnt(0)")
e.i("s_cmp_lg_u32 s6, 0")
e.i("s_cbranch_scc1 L_ldB")
def ldparam(k, sp):
    e.i("global_load_dword v%d, v%d, s[%d:%d]" % (vRaw + 2 * k, vT, sp, sp + 1))
    e.i("global_load_short_d16_hi v%d, v%d, s[%d:%d] offset:256" % (vRaw + 2 * k + 1, vT + 1, sp, sp + 1))
e.i("global_load_ushort v%d, v%d, s[26:27]" % (vRaw + 12, vT + 2))
for k, sp in enumerate((18, 20, 22, 24)): ldparam(k, sp)
e.i("global_load_ushort v%d, v%d, s[28:29]" % (vRaw + 13, vT + 2))
e.i("s_branch L_ldU")
e.label("L_ldB")
e.i("global_load_ushort v%d, v%d, s[30:31]" % (vRaw + 12, vT + 2))
for k, sp in enumerate((18, 20, 26, 28, 22, 24)): ldparam(k, sp)
e.i("global_load_ushort v%d, v%d, s[32:33]" % (vRaw + 13, vT + 2))
e.label("L_ldU")

e.i("s_mul_i32 s34, s3, %d" % SW)
e.i("s_add_u32 s34, s34, %d" % SBASE)
e.i("s_mov_b32 m0, s34")
e.valu("v_and_b32 v%d, 31, v%d" % (vT, vLane), wr=[vT])
e.valu("v_lshrrev_b32 v%d, 5, v%d" % (vT + 1, vLane), wr=[vT + 1])
e.valu("v_lshl_add_u32 v%d, v%d, 4, s34" % (vT + 2, vT + 1), wr=[vT + 2])
e.valu("v_mul_u32_u24 v%d, 272, v%d" % (vRB, vT), wr=[vRB])
e.valu("v_add_u32 v%d, v%d, v%d" % (vRB, vRB, vT + 2), wr=[vRB])
e.valu("v_mov_b32 v%d, v%d" % (vT + 3, vT), wr=[vT + 3])
for a, b in ((5, 4), (12, 7), (13, 7), (20, 15)):
    e.i("v_cmp_ne_u32 vcc, %d, v%d" % (a, vT))
    e.nop(2)
    e.valu("v_cndmask_b32 v%d, %d, v%d, vcc" % (vT + 3, b, vT + 3), wr=[vT + 3])
e.valu("v_mul_u32_u24 v%d, 272, v%d" % (vRA, vT + 3), wr=[vRA])
e.valu("v_add_u32 v%d, v%d, v%d" % (vRA, vRA, vT + 2), wr=[vRA])
e.valu("v_lshlrev_b32 v%d, 7, v%d" % (vT + 3, vT + 1), wr=[vT + 3])
e.valu("v_lshl_add_u32 v%d, v%d, 1, v%d" % (vT + 3, vT, vT + 3), wr=[vT + 3])
e.i("s_add_u32 s35, s34, 190")
e.valu("v_sub_u32 v%d, s35, v%d" % (vKdW, vT + 3), wr=[vKdW])
e.i("s_add_u32 s35, s34, 1328")
e.valu("v_lshlrev_b32 v%d, 4, v%d" % (vT + 3, vLane), wr=[vT + 3])
e.valu("v_sub_u32 v%d, s35, v%d" % (vKx, vT + 3), wr=[vKx])
e.valu("v_lshlrev_b32 v%d, 4, v%d" % (vT + 3, vKg), wr=[vT + 3])
e.valu("v_lshlrev_b32 v%d, 1, v%d" % (vT + 4, vLo), wr=[vT + 4])
e.valu("v_sub_u32 v%d, v%d, v%d" % (vT + 5, vT + 3, vT + 4), wr=[vT + 5])
e.valu("v_and_b32 v%d, 1, v%d" % (vT + 6, vLo), wr=[vT + 6])
e.valu("v_mul_u32_u24 v%d, %d, v%d" % (vT + 6, RO - RE + 2, vT + 6), wr=[vT + 6])
e.valu("v_sub_u32 v%d, v%d, v%d" % (vT + 5, vT + 5, vT + 6), wr=[vT + 5])
e.i("s_add_u32 s35, s34, %d" % (RE + 30 + RO - RE + 2))
e.valu("v_add_u32 v%d, s35, v%d" % (vAad, vT + 5), wr=[vAad])
e.valu("v_add_u32 v%d, 1024, v%d" % (vAad + 1, vAad), wr=[vAad + 1])
e.valu("v_add_u32 v%d, 2048, v%d" % (vAad + 2, vAad), wr=[vAad + 2])
e.valu("v_lshlrev_b32 v%d, 2, v%d" % (vT + 5, vLo), wr=[vT + 5])
e.valu("v_sub_u32 v%d, v%d, v%d" % (vT + 5, vT + 3, vT + 5), wr=[vT + 5])
e.i("s_add_u32 s35, s34, 60")
e.valu("v_add_u32 v%d, s35, v%d" % (vKdA, vT + 5), wr=[vKdA])
e.i("s_mul_i32 s35, s3, %d" % USZ)
e.i("s_add_u32 s35, s35, %d" % UBASE)
e.valu("v_lshl_add_u32 v%d, v%d, 5, v%d" % (vT + 5, vLo, vT + 3), wr=[vT + 5])
e.valu("v_add_u32 v%d, s35, v%d" % (vUrd, vT + 5), wr=[vUrd])
e.valu("v_lshl_add_u32 v%d, v%d, 3, s35" % (vT + 5, vLane), wr=[vT + 5])
e.valu("v_mov_b32 v%d, 0" % (vKacc), wr=[vKacc])
e.valu("v_mov_b32 v%d, 0" % (vKacc + 1), wr=[vKacc + 1])
e.i("s_mov_b32 exec_hi, 0x0fffffff")
e.ds("ds_write_b64 v%d, %s" % (vT + 5, vr(vKacc, 2)))
e.i("s_mov_b32 exec_hi, -1")
for k in range(2, 16): e.valu("v_mov_b32 v%d, 0" % (vKacc + k), wr=[vKacc + k])
e.i("s_mul_i32 s35, s3, %d" % YS)
e.i("s_add_u32 s35, s35, %d" % YBASE)
e.valu("v_lshlrev_b32 v%d, 5, v%d" % (vT + 5, vLo), wr=[vT + 5])
e.valu("v_lshl_add_u32 v%d, v%d, 3, v%d" % (vT + 5, vKg, vT + 5), wr=[vT + 5])
e.valu("v_add_u32 v%d, s35, v%d" % (vYw, vT + 5), wr=[vYw])
e.valu("v_lshrrev_b32 v%d, 2, v%d" % (vT + 5, vLo), wr=[vT + 5])
e.valu("v_mul_u32_u24 v%d, %d, v%d" % (vT + 5, YS, vT + 5), wr=[vT + 5])
e.valu("v_and_b32 v%d, 3, v%d" % (vT + 6, vLo), wr=[vT + 6])
e.valu("v_lshl_add_u32 v%d, v%d, 3, v%d" % (vT + 5, vT + 6, vT + 5), wr=[vT + 5])
e.valu("v_and_b32 v%d, 1, v%d" % (vT + 6, vKg), wr=[vT + 6])
e.valu("v_lshl_add_u32 v%d, v%d, 5, v%d" % (vT + 5, vT + 6, vT + 5), wr=[vT + 5])
e.i("s_lshl_b32 s35, s3, 6")
e.i("s_add_u32 s35, s35, %d" % YBASE)
e.valu("v_add_u32 v%d, s35, v%d" % (vTrA, vT + 5), wr=[vTrA])
e.i("s_mul_i32 s35, s3, %d" % (32 * 2560))
e.i("s_lshl_b32 s36, s4, 4")
e.i("s_add_u32 s35, s35, s36")
e.valu("v_mul_u32_u24 v%d, 2560, v%d" % (vT + 5, vT), wr=[vT + 5])
e.valu("v_add_u32 v%d, s35, v%d" % (vOutA, vT + 5), wr=[vOutA])
e.i("s_mov_b32 s37, 0xffff")
e.i("s_mov_b32 s38, 0x05040100")
e.i("s_mov_b32 s39, 0x07060302")
e.valu("v_lshlrev_b32 v%d, 3, v%d" % (vT + 4, vKg), wr=[vT + 4])
for (vb, msk) in ((vBox9, 0x1ff << 4), (vBox7, 0x7f << 5)):
    e.valu("v_mov_b32 v%d, 0x%x" % (vT + 5, msk), wr=[vT + 5])
    e.valu("v_lshlrev_b32 v%d, v%d, v%d" % (vT + 5, vLo, vT + 5), wr=[vT + 5])
    e.valu("v_lshrrev_b32 v%d, v%d, v%d" % (vT + 5, vT + 4, vT + 5), wr=[vT + 5])
    for d in range(4):
        e.valu("v_bfe_i32 v%d, v%d, %d, 1" % (vT + 6, vT + 5, 2 * d), wr=[vT + 6])
        e.valu("v_bfe_i32 v%d, v%d, %d, 1" % (vT + 7, vT + 5, 2 * d + 1), wr=[vT + 7])
        e.valu("v_bfi_b32 v%d, s37, v%d, v%d" % (vb + d, vT + 6, vT + 7), wr=[vb + d])
        e.valu("v_and_b32 v%d, 0x3f803f80, v%d" % (vb + d, vb + d), wr=[vb + d])

e.i("s_barrier")
for i in range(4):
    e.i("global_load_dwordx4 %s, v%d, s[16:17] offset:%d nt" % (vr(vU + 4 * i, 4), vWA, 1280 * i))
e.i("s_waitcnt vmcnt(4)")
e.stamp(1)
vdt = vT; vdtl = vT + 1; vdtr = vT + 2
e.valu("v_lshlrev_b32 v%d, 16, v%d" % (vdt, vRaw + 12), wr=[vdt])
e.valu("v_mul_f32 v%d, 0x%x, v%d" % (vdt, f2u(LOG2E), vdt), wr=[vdt])
e.valu("v_exp_f32 v%d, v%d" % (vdt, vdt), wr=[vdt], trans=True)
e.valu("v_lshlrev_b32 v%d, 16, v%d" % (vD, vRaw + 13), wr=[vD])
e.valu("v_cvt_pk_bf16_f32 v%d, v%d, v%d" % (vdt, vdt, vdt), rd=[vdt], wr=[vdt])
e.valu("v_and_b32 v%d, 0xffff0000, v%d" % (vdt, vdt), wr=[vdt])
e.valu("v_mul_f32 v%d, 0x%x, v%d" % (vdtl, f2u(LOG2E), vdt), wr=[vdtl])
e.valu("v_mul_f32 v%d, 0x%x, v%d" % (vdtr, f2u(INV2PI), vdt), wr=[vdtr])
e.i("v_cmp_eq_u32 vcc, 0, v%d" % vLane)
def UP(k, u): return (vRaw + 2 * k + 1) if u == 2 else (vCh + 2 * k + u)
def unpack(k):
    e.valu("v_lshlrev_b32 v%d, 16, v%d" % (UP(k, 0), vRaw + 2 * k), wr=[UP(k, 0)])
    e.valu("v_and_b32 v%d, 0xffff0000, v%d" % (UP(k, 1), vRaw + 2 * k), wr=[UP(k, 1)])
for k in range(4): unpack(k)
e.valu("v_cndmask_b32 v%d, 0, v%d, vcc" % (vD, vD), wr=[vD])
for u in range(3):
    e.valu("v_mul_f32 v%d, v%d, v%d" % (vP + 4 * u + 1, UP(1, u), vdtr), wr=[vP + 4 * u + 1])
e.i("s_cmp_lg_u32 s6, 0")
e.i("s_cbranch_scc1 L_prepB")
e.valu("v_add_f32 v%d, v%d, v%d" % (vdt, vdt, vdt), wr=[vdt])
for u in range(3):
    e.valu("v_mul_f32 v%d, 0x%x, v%d" % (vT + 4 + u, f2u(LOG2E), UP(0, u)), wr=[vT + 4 + u])
for u in range(3):
    e.valu("v_exp_f32 v%d, v%d" % (vT + 4 + u, vT + 4 + u), wr=[vT + 4 + u], trans=True)
for u in range(3):
    e.valu("v_mul_f32 v%d, v%d, v%d" % (vP + 4 * u + 2, UP(2, u), vdt), wr=[vP + 4 * u + 2])
    e.valu("v_mul_f32 v%d, v%d, v%d" % (vP + 4 * u + 3, UP(3, u), vdt), wr=[vP + 4 * u + 3])
for u in range(3):
    e.valu("v_cvt_pk_bf16_f32 v%d, v%d, v%d" % (vT + 4 + u, vT + 4 + u, vT + 4 + u), rd=[vT + 4 + u], wr=[vT + 4 + u])
    e.valu("v_and_b32 v%d, 0xffff0000, v%d" % (vT + 4 + u, vT + 4 + u), wr=[vT + 4 + u])
    e.valu("v_mul_f32 v%d, -v%d, v%d" % (vP + 4 * u, vT + 4 + u, vdtl), wr=[vP + 4 * u])
e.i("s_branch L_prepDone")
e.label("L_prepB")
unpack(4); unpack(5)
for u in range(3):
    e.valu("v_mul_f32 v%d, v%d, v%d" % (vP + 4 * u, UP(0, u), vdtl), wr=[vP + 4 * u])
    e.valu("v_mul_f32 v%d, v%d, v%d" % (UP(4, u), UP(4, u), vdt), wr=[UP(4, u)])
    e.valu("v_mul_f32 v%d, v%d, v%d" % (UP(5, u), UP(5, u), vdt), wr=[UP(5, u)])
    e.valu("v_mul_f32 v%d, v%d, v%d" % (vP + 4 * u + 2, UP(2, u), UP(4, u)), wr=[vP + 4 * u + 2])
    e.valu("v_mul_f32 v%d, v%d, v%d" % (vP + 4 * u + 3, UP(2, u), UP(5, u)), wr=[vP + 4 * u + 3])
    e.valu("v_fma_f32 v%d, -v%d, v%d, v%d" % (vP + 4 * u + 2, UP(3, u), UP(5, u), vP + 4 * u + 2), wr=[vP + 4 * u + 2])
    e.valu("v_fma_f32 v%d, v%d, v%d, v%d" % (vP + 4 * u + 3, UP(3, u), UP(4, u), vP + 4 * u + 3), wr=[vP + 4 * u + 3])
e.label("L_prepDone")

def anchor_ops(pa):
    ops = []
    T = vT
    for (k, (P, vz)) in enumerate(((8, vZ8), (1, vZ1), (256, vZ256))):
        te, tf = T + 2 * k, T + 2 * k + 1
        if P == 1:
            ops.append(lambda te=te: e.valu("v_exp_f32 v%d, v%d" % (te, pa), wr=[te], trans=True))
            ops.append(lambda tf=tf: e.valu("v_fract_f32 v%d, v%d" % (tf, pa + 1), wr=[tf]))
        else:
            ops.append(lambda te=te, P=P: e.valu("v_mul_f32 v%d, 0x%x, v%d" % (te, f2u(float(P)), pa), wr=[te]))
            ops.append(lambda tf=tf, P=P: e.valu("v_mul_f32 v%d, 0x%x, v%d" % (tf, f2u(float(P)), pa + 1), wr=[tf]))
            ops.append(lambda te=te: e.valu("v_exp_f32 v%d, v%d" % (te, te), wr=[te], trans=True))
            ops.append(lambda tf=tf: e.valu("v_fract_f32 v%d, v%d" % (tf, tf), wr=[tf]))
        ops.append(lambda tf=tf, vz=vz: e.valu("v_cos_f32 v%d, v%d" % (vz, tf), wr=[vz], trans=True))
        ops.append(lambda tf=tf, vz=vz: e.valu("v_sin_f32 v%d, v%d" % (vz + 1, tf), wr=[vz + 1], trans=True))
        ops.append(lambda te=te, vz=vz: e.valu("v_mul_f32 v%d, v%d, v%d" % (vz, vz, te), rd=[vz, te], wr=[vz]))
        ops.append(lambda te=te, vz=vz: e.valu("v_mul_f32 v%d, v%d, v%d" % (vz + 1, vz + 1, te), rd=[vz + 1, te], wr=[vz + 1]))
    return ops
def cmul(d, x, m):
    e.valu("v_pk_mul_f32 %s, %s, %s op_sel_hi:[1,0]" % (vr(d, 2), vr(x, 2), vr(m, 2)), wr=[d, d + 1])
    e.valu("v_pk_fma_f32 %s, %s, %s, %s op_sel:[1,1,0] op_sel_hi:[0,1,1] neg_lo:[1,0,0]" % (vr(d, 2), vr(x, 2), vr(m, 2), vr(d, 2)), wr=[d, d + 1])
def wr2(r0, p0, r1, p1):
    assert 0
def wr1(r0, p0):
    e.ds("ds_write_addtid_b32 v%d offset:%d" % (p0, 272 * r0))

for op in anchor_ops(vP): op()
e.i("s_mov_b32 s40, 3")
e.label("L_kgen")
pk = lambda k: vPk + (k % 16)
e.valu("v_mov_b32 v%d, 0x3f80" % pk(0), wr=[pk(0)])
e.valu("v_cvt_pk_bf16_f32 v%d, v%d, v%d" % (pk(1), vZ8, vZ8 + 1), wr=[pk(1)])
wr1(0, pk(0)); wr1(1, pk(1))
prev = vZ8
for c in range(2, 32):
    cur = vCh + 2 * (c % 2)
    cmul(cur, prev, vZ8)
    e.valu("v_cvt_pk_bf16_f32 v%d, v%d, v%d" % (pk(c), cur, cur + 1), wr=[pk(c)])
    wr1(c, pk(c))
    prev = cur
for s in range(8):
    e.ds("ds_read_b128 %s, v%d offset:%d" % (vr(vVF + 4 * s, 4), vRB, 32 * s), tag="VF", wr=R(vVF + 4 * s, 4))
def mrow(h, r): return 8 * (r >> 2) + 4 * h + (r & 3)
SROW = {}
for r in range(9): SROW[r] = mrow(0, r)
for r, x in ((0, 0), (2, 2), (3, 4), (6, 6), (7, 8)): SROW[256 + x] = mrow(1, r)
for r, x in enumerate((0, 4, 8)): SROW[512 + x] = mrow(0, 9 + r); SROW[768 + x] = mrow(1, 9 + r)
SROW[1032] = mrow(0, 12); SROW[1288] = mrow(0, 13); SROW[1544] = mrow(1, 12); SROW[1800] = mrow(1, 13)
wreg = {0: vP + 2}
seq = [(p, p - 1, vZ1) for p in range(1, 9)] + [(256 + x, x, vZ256) for x in (0, 2, 4, 6, 8)] + \
      [(512 + x, 256 + x, vZ256) for x in (0, 4, 8)] + [(768 + x, 512 + x, vZ256) for x in (0, 4, 8)] + \
      [(1032, 776, vZ256), (1288, 1032, vZ256), (1544, 1288, vZ256), (1800, 1544, vZ256)]
pend = {}
cnt = [0]
remaining = {}
for P in SROW: remaining[SROW[P] // 4] = remaining.get(SROW[P] // 4, 0) + 1
def emitW(P):
    p = pk(cnt[0]); cnt[0] += 1
    e.valu("v_cvt_pk_bf16_f32 v%d, v%d, -v%d" % (p, wreg[P], wreg[P] + 1), wr=[p])
    wr1(SROW[P], p)
emitW(0)
for k, (P, src, m) in enumerate(seq):
    wreg[P] = vCh + 2 * (k % 16)
    cmul(wreg[P], wreg[src], m)
    emitW(P)
assert not pend
for s in range(8):
    e.ds("ds_read_b128 %s, v%d offset:%d" % (vr(vWF + 4 * s, 4), vRA, 32 * s), tag="WF%d" % s, wr=R(vWF + 4 * s, 4))
for k in range(8): e.valu("v_mov_b32 v%d, v%d" % (vP + k, vP + 4 + k), wr=[vP + k])
aops = anchor_ops(vP)
per = (len(aops) + 7) // 8
for s in range(8):
    e.wait("WF%d" % s)
    e.mfma(32, vKacc, vWF + 4 * s, vVF + 4 * s, vKacc)
    for op in aops[s * per:(s + 1) * per]: op()
e.i("s_sub_u32 s40, s40, 1")
e.i("s_cmp_lg_u32 s40, 0")
e.i("s_cbranch_scc1 L_kgen")
e.stamp(2)

e.i("s_waitcnt vmcnt(0)")
e.stamp(3)
for d in range(4):
    for half, sel in ((0, "s38"), (1, "s39")):
        ch = 2 * d + half
        t = vPk + 2 * ch
        e.valu("v_perm_b32 v%d, v%d, v%d, %s" % (t, vU + 4 + d, vU + d, sel), wr=[t])
        e.valu("v_perm_b32 v%d, v%d, v%d, %s" % (t + 1, vU + 12 + d, vU + 8 + d, sel), wr=[t + 1])
        e.ds("ds_write_b64 v%d, %s offset:%d" % (vUw, vr(t, 2), ch * USZ + 480))

K = vKacc
X = vCh
e.valu("v_lshrrev_b32 v%d, 2, v%d" % (vT, vLane), wr=[vT])
e.valu("v_mul_u32_u24 v%d, 2112, v%d" % (vT, vT), wr=[vT])
e.valu("v_and_b32 v%d, 3, v%d" % (vT + 1, vLane), wr=[vT + 1])
e.valu("v_lshl_add_u32 v%d, v%d, 4, v%d" % (vT, vT + 1, vT), wr=[vT])
e.valu("v_add_u32 v%d, s34, v%d" % (vT, vT), wr=[vT])
for k in range(4): e.valu("v_mov_b32 v%d, 0" % (X + 16 + k), wr=[X + 16 + k])
e.i("s_mov_b64 exec, 0xfff")
e.ds("ds_write_b128 v%d, %s offset:256" % (vT, vr(X + 16, 4)))
e.i("s_mov_b64 exec, -1")
e.valu("v_add_f32 v%d, v%d, v%d" % (K, K, vD), rd=[K], wr=[K])
def cv(d, a, b): e.valu("v_cvt_pk_bf16_f32 v%d, v%d, v%d" % (d, a, b), rd=[a, b], wr=[d])
for k in range(4): cv(X + k, K + 7 - 2 * k, K + 6 - 2 * k)
e.ds("ds_write_b128 v%d, %s offset:%d" % (vKx, vr(X, 4), 16 + 1024))
for k in range(4): cv(X + 4 + k, K + 8 - 2 * k, K + 7 - 2 * k)
e.ds("ds_write_b128 v%d, %s offset:%d" % (vKx, vr(X + 4, 4), 16 + 1024 + 2112))
k0, k4, k8 = K + 9, K + 10, K + 11
for k, (a, b) in enumerate(((k8, k8), (k4, k4), (k4, k0), (k0, k0))): cv(X + 8 + k, a, b)
e.ds("ds_write_b128 v%d, %s offset:%d" % (vKx, vr(X + 8, 4), 16))
for k, (a, b) in enumerate(((k8, k8), (k8, k4), (k4, k4), (k0, k0))): cv(X + 12 + k, a, b)
e.ds("ds_write_b128 v%d, %s offset:%d" % (vKx, vr(X + 12, 4), 16 + 2112))
cv(X + 24, K + 12, K + 13)
e.ds("ds_write_b16 v%d, v%d offset:64" % (vKdW, X + 24))
e.ds("ds_write_b16_d16_hi v%d, v%d" % (vKdW, X + 24))
e.valu("v_mov_b32 v%d, v%d" % (X + 18, X + 8), wr=[X + 18])
e.valu("v_mov_b32 v%d, v%d" % (X + 19, X + 8), wr=[X + 19])
e.valu("v_mov_b32 v%d, 0" % (X + 20), wr=[X + 20])
e.valu("v_and_b32 v%d, 0xffff0000, v%d" % (X + 21, X + 8), wr=[X + 21])
e.valu("v_mov_b32 v%d, v%d" % (X + 22, X + 8), wr=[X + 22])
e.valu("v_mov_b32 v%d, v%d" % (X + 23, X + 8), wr=[X + 23])
e.i("s_mov_b32 exec_lo, 0")
e.i("s_mov_b32 exec_hi, 0x80000000")
e.ds("ds_write_b128 v%d, %s" % (vKx, vr(X + 20, 4)))
e.ds("ds_write_b128 v%d, %s offset:2112" % (vKx, vr(X + 16, 4)))
e.i("s_mov_b64 exec, 1")
e.ds("ds_write_b16_d16_hi v%d, v%d offset:%d" % (vKx, X + 3, 16 + 1024 + 2112 + 16))
e.i("s_mov_b64 exec, -1")
e.waitall()
for sg in range(33):
    idx = 32 - sg
    a = vAad + (idx >> 4); o = 16 * (idx & 15)
    e.ds("ds_read2_b32 %s, v%d offset0:%d offset1:%d" % (vr(vAF + 4 * sg, 2), a, o, o + 1), wr=R(vAF + 4 * sg, 2))
    e.ds("ds_read2_b32 %s, v%d offset0:%d offset1:%d" % (vr(vAF + 4 * sg + 2, 2), a, o + 2, o + 3), wr=R(vAF + 4 * sg + 2, 2))
for q in range(4, 8):
    o = 16 * (7 - q); d = vKdF + 4 * (q - 4)
    e.ds("ds_read2_b32 %s, v%d offset0:%d offset1:%d" % (vr(d, 2), vKdA, o, o + 1))
    e.ds("ds_read2_b32 %s, v%d offset0:%d offset1:%d" % (vr(d + 2, 2), vKdA, o + 2, o + 3))
e.i("s_barrier")
e.stamp(4)

PASSES = [[0, 1, 2, 3, 4], [5, 6], [7]]
steps = []
for ps in PASSES:
    lo = max(-7, 8 * ps[0] - 32); hi = 8 * ps[-1]
    for nu in range(lo, hi + 1):
        acts = [("c", n, 8 * n - nu) for n in ps if 0 <= 8 * n - nu <= 32]
        if ps is PASSES[0] and nu in (0, 8, 16, 24):
            steps.append((64 * (nu + 7) - 16, [("fe", nu // 8)]))
            acts = [("fo", nu // 8)] + acts
        if acts: steps.append((64 * (nu + 7), acts))
started = set()
deferred = []
DEPTH = NBR - 1
def issue_read(k):
    if k < len(steps):
        r = vBR + 4 * (k % NBR)
        e.ds("ds_read_b128 %s, v%d offset:%d" % (vr(r, 4), vUrd, steps[k][0]), tag="B%d" % k)
def do_cvtF(b):
    for r in range(4): cv(vF + 4 * b + r, vFT + r, vFT + 4 + r)
def do_ywrite(n):
    a = vAcc + 4 * n
    cv(vYp, a, a + 1); cv(vYp + 1, a + 2, a + 3)
    e.ds("ds_write_b64 v%d, %s offset:%d" % (vYw, vr(vYp, 2), 512 * n), tag="Y%d" % n)
def do_bar(n):
    e.wait("Y%d" % n)
    e.i("s_barrier")
    e.ds("ds_read_b64_tr_b16 %s, v%d offset:%d" % (vr(vSt, 2), vTrA, 512 * n), tag="T%da" % n)
    e.ds("ds_read_b64_tr_b16 %s, v%d offset:%d" % (vr(vSt + 2, 2), vTrA, 512 * n + 4 * YS), tag="T%d" % n)
def do_store(n):
    e.wait("T%d" % n)
    e.i("s_mov_b32 exec_hi, 0")
    e.i("global_store_dwordx4 v%d, %s, s[8:9]" % (vOutA, vr(vSt, 4)))
    e.i("s_mov_b32 exec_hi, -1")
    e.valu("v_add_u32 v%d, %d, v%d" % (vOutA, 256 * 2560, vOutA), wr=[vOutA])
for k in range(DEPTH): issue_read(k)
for k, (off, acts) in enumerate(steps):
    issue_read(k + DEPTH)
    e.wait("B%d" % k)
    b = vBR + 4 * (k % NBR)
    for a in acts:
        if a[0] == "fe": e.mfma(16, vFT, b, vBox9)
        elif a[0] == "fo":
            e.mfma(16, vFT + 4, b, vBox7)
            deferred.append((k + 2, lambda bb=a[1]: do_cvtF(bb)))
        else:
            _, n, sg = a
            acc = vAcc + 4 * n
            e.mfma(16, acc, vAF + 4 * sg, b, acc if n in started else None)
            started.add(n)
            if sg == 8 and n >= 4:
                for fb in range(n - 3):
                    e.mfma(16, acc, vF + 4 * fb, vKdF + 4 * (n - fb - 4), acc)
            if sg == 0:
                deferred.append((k + 2, lambda nn=n: do_ywrite(nn)))
                deferred.append((k + 4, lambda nn=n: do_bar(nn)))
                deferred.append((k + 6, lambda nn=n: do_store(nn)))
    due = [d for d in deferred if d[0] <= k]
    deferred = [d for d in deferred if d[0] > k]
    for d in due: d[1]()
for d in sorted(deferred, key=lambda x: x[0]): d[1]()
e.stamp(5)
if STAMP:
    e.i("s_waitcnt vmcnt(0)")
    e.stamp(6)
    e.i("s_lshl_b32 s41, s2, 3")
    e.i("s_add_u32 s41, s41, s3")
    e.i("s_lshl_b32 s41, s41, 5")
    e.i("s_mov_b64 exec, 1")
    for k in range(1, 7):
        e.i("s_sub_u32 s42, s%d, s60" % (60 + 2 * k))
        e.i("v_mov_b32 v1, s41")
        e.i("v_mov_b32 v2, s42")
        e.i("global_store_dword v1, v2, s[10:11] offset:%d" % (4 * k))
        e.i("s_waitcnt vmcnt(0)")
e.label("L_end")
e.i("s_endpgm")
e.raw(""".section .rodata,"a"
.p2align 6
.amdhsa_kernel %s
  .amdhsa_next_free_vgpr 256
  .amdhsa_next_free_sgpr 102
  .amdhsa_accum_offset 256
  .amdhsa_group_segment_fixed_size 0
  .amdhsa_kernarg_size 152
  .amdhsa_user_sgpr_count 2
  .amdhsa_user_sgpr_kernarg_segment_ptr 1
  .amdhsa_system_sgpr_workgroup_id_x 1
.end_amdhsa_kernel""" % NAME)
open(OUT, "w").write("\n".join(e.o) + "\n")
print("wrote", OUT, "instrs", e.n, "lds", LDS, "steps", len(steps))
```

```python
import sys, struct
NAME = "concat_heads__ssm_conv_s4d__ssm_conv_s4__prompt_kernel"
STAMP = "--stamp" in sys.argv or "--dbg" in sys.argv
DBG = "--dbg" in sys.argv
OUT = [a for a in sys.argv[1:] if not a.startswith("--")][0]

def f2u(x): return struct.unpack("<I", struct.pack("<f", x))[0]
LOG2E = 1.4426950408889634
INV2PI = 0.15915494309189535

class Emit:
    def __init__(self):
        self.o = []
        self.n = 0
        self.mf = {}
        self.vw = {}
        self.tr = {}
        self.q = []
    def raw(self, s): self.o.append(s)
    def label(self, s): self.o.append(s + ":")
    def nop(self, k):
        while k > 0:
            m = min(k, 16)
            self.o.append("    s_nop %d" % (m - 1)); self.n += m; k -= m
    def need(self, regs, table, dist=None):
        pad = 0
        for r in regs:
            if r in table:
                e = table[r]
                idx, d = e if isinstance(e, tuple) else (e, dist)
                pad = max(pad, d - (self.n - idx - 1))
        if pad > 0: self.nop(pad)
    def i(self, s):
        self.o.append("    " + s); self.n += 1
    def valu(self, s, rd=(), wr=(), trans=False):
        self.need(list(rd) + list(wr), self.mf)
        if not trans: self.need(rd, self.tr, 1)
        self.i(s)
        for r in wr:
            self.vw[r] = self.n - 1
            self.mf.pop(r, None)
            self.tr.pop(r, None)
            if trans: self.tr[r] = self.n - 1
    def mfma(self, shape, d, a, b, c=None):
        nd = 4 if shape == 16 else 16
        op = "v_mfma_f32_16x16x32_bf16" if shape == 16 else "v_mfma_f32_32x32x16_bf16"
        ra = list(range(a, a + 4)); rb = list(range(b, b + 4)); rd = list(range(d, d + nd))
        self.need(ra + rb + (rd if c is not None else []), self.vw, 2)
        self.need(ra + rb, self.mf)
        if c is None: self.need(rd, self.mf)
        cs = "0" if c is None else "v[%d:%d]" % (c, c + nd - 1)
        self.i("%s v[%d:%d], v[%d:%d], v[%d:%d], %s" % (op, d, d + nd - 1, a, a + 3, b, b + 3, cs))
        for r in rd: self.mf[r] = (self.n - 1, 8 if shape == 16 else 12)
    def ds(self, s, tag=None, rd=(), wr=()):
        self.need(list(rd) + list(wr), self.mf)
        self.need(rd, self.tr, 1)
        self.i(s); self.q.append(tag)
    def wait(self, tag):
        if tag not in self.q: return
        idx = len(self.q) - 1 - self.q[::-1].index(tag)
        n = len(self.q) - 1 - idx
        self.i("s_waitcnt lgkmcnt(%d)" % min(n, 15))
        self.q = self.q[idx + 1:]
    def waitall(self):
        self.i("s_waitcnt lgkmcnt(0)"); self.q = []
    def stamp(self, k):
        if STAMP:
            self.i("s_memtime s[%d:%d]" % (60 + 2 * k, 61 + 2 * k))
            self.waitall()

e = Emit()
def R(a, n): return list(range(a, a + n))
def vr(a, n): return "v[%d:%d]" % (a, a + n - 1)

NCH = 8
USZ = 4576
SW = 8704
SBASE = 0
UBASE = SBASE + 8 * SW
YS = 4096 + 64
YBASE = UBASE + NCH * USZ
LDS = YBASE + NCH * YS
RE = 272; RO = 2384

vTid, vLane, vLo, vKg = 0, 1, 2, 3
vWA = 4
vRB, vRA = 12, 13
vUrd, vYw = 14, 15
vU = 16
vBox9, vBox7 = 32, 36
vAad = 40
vKdA, vTrA, vOutA, vUw, vKx = 43, 44, 45, 46, 47
vRaw = 48
vP = 64
vD = 76; vKdW = 77
vZ1, vZ8, vZ256 = 82, 84, 86
vT = 88
vCh = 96
vPk = 128
vVF = 144; vWF = 176; vKacc = 208
vAF = 48; vAcc = 180; vBR = 212; NBR = 6
vF = 16; vKdF = 236; vFT = 4
vYp = 12
vSt = 252

hdr = open("concat_heads__ssm_conv_s4d__ssm_conv_s4__prompt.s.ref").read().split("; @launch")[0]
e.raw(hdr.rstrip("\n"))
e.raw("; @launch grid=(160,1,1) block=(512,1,1) lds=%d" % LDS)
e.raw('.amdgcn_target "amdgcn-amd-amdhsa--gfx950"')
e.raw(".text\n.globl %s\n.p2align 8\n.type %s,@function\n%s:" % (NAME, NAME, NAME))

e.i("s_cmp_ge_u32 s2, 160")
e.i("s_cbranch_scc1 L_end")
if STAMP: e.i("s_memtime s[60:61]")
if DBG: e.i("s_memrealtime s[80:81]")
e.i("s_and_b32 s4, s2, 7")
e.i("s_mul_i32 s4, s4, 20")
e.i("s_lshr_b32 s7, s2, 3")
e.i("s_add_u32 s4, s4, s7")
e.i("s_load_dwordx2 s[8:9], s[0:1], 128")
if STAMP: e.i("s_load_dwordx2 s[10:11], s[0:1], %d" % (136 if DBG else 144))
e.i("s_cmp_ge_u32 s4, 80")
e.i("s_cselect_b32 s6, 56, 0")
e.i("s_cselect_b32 s5, 80, 0")
e.i("s_load_dwordx16 s[16:31], s[0:1], s6")
e.i("s_load_dwordx2 s[32:33], s[0:1], 120")
e.i("s_sub_u32 s5, s4, s5")
e.valu("v_lshrrev_b32 v%d, 6, v0" % vT, wr=[vT])
e.valu("v_and_b32 v%d, 63, v0" % vLane, wr=[vLane])
e.i("v_readfirstlane_b32 s3, v%d" % vT)
e.valu("v_and_b32 v%d, 15, v%d" % (vLo, vLane), wr=[vLo])
e.valu("v_lshrrev_b32 v%d, 4, v%d" % (vKg, vLane), wr=[vKg])
e.i("s_lshl_b32 s12, s5, 3")
e.i("s_add_u32 s12, s12, s3")
e.i("s_mul_i32 s13, s12, 384")
e.i("s_lshl_b32 s14, s12, 1")
e.valu("v_lshl_add_u32 v%d, v%d, 2, s13" % (vT, vLane), wr=[vT])
e.valu("v_lshl_add_u32 v%d, v%d, 1, s13" % (vT + 1, vLane), wr=[vT + 1])
e.valu("v_mov_b32 v%d, s14" % (vT + 2), wr=[vT + 2])
e.i("s_mul_i32 s15, s7, 25")
e.valu("v_add_u32 v%d, s15, v0" % (vT + 3), wr=[vT + 3])
e.valu("v_and_b32 v%d, 511, v%d" % (vT + 3, vT + 3), wr=[vT + 3])
e.valu("v_lshlrev_b32 v%d, 3, v%d" % (vUw, vT + 3), wr=[vUw])
e.valu("v_add_u32 v%d, %d, v%d" % (vUw, UBASE, vUw), wr=[vUw])
e.valu("v_mul_u32_u24 v%d, 5120, v%d" % (vT + 3, vT + 3), wr=[vT + 3])
e.i("s_lshl_b32 s15, s5, 4")
e.valu("v_add_u32 v%d, s15, v%d" % (vWA, vT + 3), wr=[vWA])
for k in range(6): e.valu("v_mov_b32 v%d, 0" % (vRaw + 2 * k + 1), wr=[vRaw + 2 * k + 1])
e.i("s_waitcnt lgkmcnt(0)")
e.i("s_cmp_lg_u32 s6, 0")
e.i("s_cbranch_scc1 L_ldB")
def ldparam(k, sp):
    e.i("global_load_dword v%d, v%d, s[%d:%d]" % (vRaw + 2 * k, vT, sp, sp + 1))
    e.i("global_load_short_d16_hi v%d, v%d, s[%d:%d] offset:256" % (vRaw + 2 * k + 1, vT + 1, sp, sp + 1))
e.i("global_load_ushort v%d, v%d, s[26:27]" % (vRaw + 12, vT + 2))
for k, sp in enumerate((18, 20, 22, 24)): ldparam(k, sp)
e.i("global_load_ushort v%d, v%d, s[28:29]" % (vRaw + 13, vT + 2))
e.i("s_branch L_ldU")
e.label("L_ldB")
e.i("global_load_ushort v%d, v%d, s[30:31]" % (vRaw + 12, vT + 2))
for k, sp in enumerate((18, 20, 26, 28, 22, 24)): ldparam(k, sp)
e.i("global_load_ushort v%d, v%d, s[32:33]" % (vRaw + 13, vT + 2))
e.label("L_ldU")

e.i("s_mul_i32 s34, s3, %d" % SW)
e.i("s_add_u32 s34, s34, %d" % SBASE)
e.i("s_mov_b32 m0, s34")
e.valu("v_and_b32 v%d, 31, v%d" % (vT, vLane), wr=[vT])
e.valu("v_lshrrev_b32 v%d, 5, v%d" % (vT + 1, vLane), wr=[vT + 1])
e.valu("v_lshl_add_u32 v%d, v%d, 4, s34" % (vT + 2, vT + 1), wr=[vT + 2])
e.valu("v_mul_u32_u24 v%d, 272, v%d" % (vRB, vT), wr=[vRB])
e.valu("v_add_u32 v%d, v%d, v%d" % (vRB, vRB, vT + 2), wr=[vRB])
e.valu("v_mov_b32 v%d, v%d" % (vT + 3, vT), wr=[vT + 3])
for a, b in ((5, 4), (12, 7), (13, 7), (20, 15)):
    e.i("v_cmp_ne_u32 vcc, %d, v%d" % (a, vT))
    e.nop(2)
    e.valu("v_cndmask_b32 v%d, %d, v%d, vcc" % (vT + 3, b, vT + 3), wr=[vT + 3])
e.valu("v_mul_u32_u24 v%d, 272, v%d" % (vRA, vT + 3), wr=[vRA])
e.valu("v_add_u32 v%d, v%d, v%d" % (vRA, vRA, vT + 2), wr=[vRA])
e.valu("v_lshlrev_b32 v%d, 7, v%d" % (vT + 3, vT + 1), wr=[vT + 3])
e.valu("v_lshl_add_u32 v%d, v%d, 1, v%d" % (vT + 3, vT, vT + 3), wr=[vT + 3])
e.i("s_add_u32 s35, s34, 190")
e.valu("v_sub_u32 v%d, s35, v%d" % (vKdW, vT + 3), wr=[vKdW])
e.i("s_add_u32 s35, s34, 1328")
e.valu("v_lshlrev_b32 v%d, 4, v%d" % (vT + 3, vLane), wr=[vT + 3])
e.valu("v_sub_u32 v%d, s35, v%d" % (vKx, vT + 3), wr=[vKx])
e.valu("v_lshlrev_b32 v%d, 4, v%d" % (vT + 3, vKg), wr=[vT + 3])
e.valu("v_lshlrev_b32 v%d, 1, v%d" % (vT + 4, vLo), wr=[vT + 4])
e.valu("v_sub_u32 v%d, v%d, v%d" % (vT + 5, vT + 3, vT + 4), wr=[vT + 5])
e.valu("v_and_b32 v%d, 1, v%d" % (vT + 6, vLo), wr=[vT + 6])
e.valu("v_mul_u32_u24 v%d, %d, v%d" % (vT + 6, RO - RE + 2, vT + 6), wr=[vT + 6])
e.valu("v_sub_u32 v%d, v%d, v%d" % (vT + 5, vT + 5, vT + 6), wr=[vT + 5])
e.i("s_add_u32 s35, s34, %d" % (RE + 30 + RO - RE + 2))
e.valu("v_add_u32 v%d, s35, v%d" % (vAad, vT + 5), wr=[vAad])
e.valu("v_add_u32 v%d, 1024, v%d" % (vAad + 1, vAad), wr=[vAad + 1])
e.valu("v_add_u32 v%d, 2048, v%d" % (vAad + 2, vAad), wr=[vAad + 2])
e.valu("v_lshlrev_b32 v%d, 2, v%d" % (vT + 5, vLo), wr=[vT + 5])
e.valu("v_sub_u32 v%d, v%d, v%d" % (vT + 5, vT + 3, vT + 5), wr=[vT + 5])
e.i("s_add_u32 s35, s34, 60")
e.valu("v_add_u32 v%d, s35, v%d" % (vKdA, vT + 5), wr=[vKdA])
e.i("s_mul_i32 s35, s3, %d" % USZ)
e.i("s_add_u32 s35, s35, %d" % UBASE)
e.valu("v_lshl_add_u32 v%d, v%d, 5, v%d" % (vT + 5, vLo, vT + 3), wr=[vT + 5])
e.valu("v_add_u32 v%d, s35, v%d" % (vUrd, vT + 5), wr=[vUrd])
e.valu("v_lshl_add_u32 v%d, v%d, 3, s35" % (vT + 5, vLane), wr=[vT + 5])
e.valu("v_mov_b32 v%d, 0" % (vKacc), wr=[vKacc])
e.valu("v_mov_b32 v%d, 0" % (vKacc + 1), wr=[vKacc + 1])
e.i("s_mov_b32 exec_hi, 0x0fffffff")
e.ds("ds_write_b64 v%d, %s" % (vT + 5, vr(vKacc, 2)))
e.i("s_mov_b32 exec_hi, -1")
for k in range(2, 16): e.valu("v_mov_b32 v%d, 0" % (vKacc + k), wr=[vKacc + k])
e.i("s_mul_i32 s35, s3, %d" % YS)
e.i("s_add_u32 s35, s35, %d" % YBASE)
e.valu("v_lshlrev_b32 v%d, 5, v%d" % (vT + 5, vLo), wr=[vT + 5])
e.valu("v_lshl_add_u32 v%d, v%d, 3, v%d" % (vT + 5, vKg, vT + 5), wr=[vT + 5])
e.valu("v_add_u32 v%d, s35, v%d" % (vYw, vT + 5), wr=[vYw])
e.valu("v_lshrrev_b32 v%d, 2, v%d" % (vT + 5, vLo), wr=[vT + 5])
e.valu("v_mul_u32_u24 v%d, %d, v%d" % (vT + 5, YS, vT + 5), wr=[vT + 5])
e.valu("v_and_b32 v%d, 3, v%d" % (vT + 6, vLo), wr=[vT + 6])
e.valu("v_lshl_add_u32 v%d, v%d, 3, v%d" % (vT + 5, vT + 6, vT + 5), wr=[vT + 5])
e.valu("v_and_b32 v%d, 1, v%d" % (vT + 6, vKg), wr=[vT + 6])
e.valu("v_lshl_add_u32 v%d, v%d, 5, v%d" % (vT + 5, vT + 6, vT + 5), wr=[vT + 5])
e.i("s_lshl_b32 s35, s3, 6")
e.i("s_add_u32 s35, s35, %d" % YBASE)
e.valu("v_add_u32 v%d, s35, v%d" % (vTrA, vT + 5), wr=[vTrA])
e.i("s_mul_i32 s35, s3, %d" % (32 * 2560))
e.i("s_lshl_b32 s36, s4, 4")
e.i("s_add_u32 s35, s35, s36")
e.valu("v_mul_u32_u24 v%d, 2560, v%d" % (vT + 5, vT), wr=[vT + 5])
e.valu("v_add_u32 v%d, s35, v%d" % (vOutA, vT + 5), wr=[vOutA])
e.i("s_mov_b32 s37, 0xffff")
e.i("s_mov_b32 s38, 0x05040100")
e.i("s_mov_b32 s39, 0x07060302")
e.valu("v_lshlrev_b32 v%d, 3, v%d" % (vT + 4, vKg), wr=[vT + 4])
for (vb, msk) in ((vBox9, 0x1ff << 4), (vBox7, 0x7f << 5)):
    e.valu("v_mov_b32 v%d, 0x%x" % (vT + 5, msk), wr=[vT + 5])
    e.valu("v_lshlrev_b32 v%d, v%d, v%d" % (vT + 5, vLo, vT + 5), wr=[vT + 5])
    e.valu("v_lshrrev_b32 v%d, v%d, v%d" % (vT + 5, vT + 4, vT + 5), wr=[vT + 5])
    for d in range(4):
        e.valu("v_bfe_i32 v%d, v%d, %d, 1" % (vT + 6, vT + 5, 2 * d), wr=[vT + 6])
        e.valu("v_bfe_i32 v%d, v%d, %d, 1" % (vT + 7, vT + 5, 2 * d + 1), wr=[vT + 7])
        e.valu("v_bfi_b32 v%d, s37, v%d, v%d" % (vb + d, vT + 6, vT + 7), wr=[vb + d])
        e.valu("v_and_b32 v%d, 0x3f803f80, v%d" % (vb + d, vb + d), wr=[vb + d])

e.i("s_barrier")
for i in range(4):
    e.i("global_load_dwordx4 %s, v%d, s[16:17] offset:%d nt" % (vr(vU + 4 * i, 4), vWA, 1280 * i))
e.i("s_waitcnt vmcnt(4)")
e.stamp(1)
vdt = vT; vdtl = vT + 1; vdtr = vT + 2
e.valu("v_lshlrev_b32 v%d, 16, v%d" % (vdt, vRaw + 12), wr=[vdt])
e.valu("v_mul_f32 v%d, 0x%x, v%d" % (vdt, f2u(LOG2E), vdt), wr=[vdt])
e.valu("v_exp_f32 v%d, v%d" % (vdt, vdt), wr=[vdt], trans=True)
e.valu("v_lshlrev_b32 v%d, 16, v%d" % (vD, vRaw + 13), wr=[vD])
e.valu("v_cvt_pk_bf16_f32 v%d, v%d, v%d" % (vdt, vdt, vdt), rd=[vdt], wr=[vdt])
e.valu("v_and_b32 v%d, 0xffff0000, v%d" % (vdt, vdt), wr=[vdt])
e.valu("v_mul_f32 v%d, 0x%x, v%d" % (vdtl, f2u(LOG2E), vdt), wr=[vdtl])
e.valu("v_mul_f32 v%d, 0x%x, v%d" % (vdtr, f2u(INV2PI), vdt), wr=[vdtr])
e.i("v_cmp_eq_u32 vcc, 0, v%d" % vLane)
def UP(k, u): return (vRaw + 2 * k + 1) if u == 2 else (vCh + 2 * k + u)
def unpack(k):
    e.valu("v_lshlrev_b32 v%d, 16, v%d" % (UP(k, 0), vRaw + 2 * k), wr=[UP(k, 0)])
    e.valu("v_and_b32 v%d, 0xffff0000, v%d" % (UP(k, 1), vRaw + 2 * k), wr=[UP(k, 1)])
for k in range(4): unpack(k)
e.valu("v_cndmask_b32 v%d, 0, v%d, vcc" % (vD, vD), wr=[vD])
for u in range(3):
    e.valu("v_mul_f32 v%d, v%d, v%d" % (vP + 4 * u + 1, UP(1, u), vdtr), wr=[vP + 4 * u + 1])
e.i("s_cmp_lg_u32 s6, 0")
e.i("s_cbranch_scc1 L_prepB")
e.valu("v_add_f32 v%d, v%d, v%d" % (vdt, vdt, vdt), wr=[vdt])
for u in range(3):
    e.valu("v_mul_f32 v%d, 0x%x, v%d" % (vT + 4 + u, f2u(LOG2E), UP(0, u)), wr=[vT + 4 + u])
for u in range(3):
    e.valu("v_exp_f32 v%d, v%d" % (vT + 4 + u, vT + 4 + u), wr=[vT + 4 + u], trans=True)
for u in range(3):
    e.valu("v_mul_f32 v%d, v%d, v%d" % (vP + 4 * u + 2, UP(2, u), vdt), wr=[vP + 4 * u + 2])
    e.valu("v_mul_f32 v%d, v%d, v%d" % (vP + 4 * u + 3, UP(3, u), vdt), wr=[vP + 4 * u + 3])
for u in range(3):
    e.valu("v_cvt_pk_bf16_f32 v%d, v%d, v%d" % (vT + 4 + u, vT + 4 + u, vT + 4 + u), rd=[vT + 4 + u], wr=[vT + 4 + u])
    e.valu("v_and_b32 v%d, 0xffff0000, v%d" % (vT + 4 + u, vT + 4 + u), wr=[vT + 4 + u])
    e.valu("v_mul_f32 v%d, -v%d, v%d" % (vP + 4 * u, vT + 4 + u, vdtl), wr=[vP + 4 * u])
e.i("s_branch L_prepDone")
e.label("L_prepB")
unpack(4); unpack(5)
for u in range(3):
    e.valu("v_mul_f32 v%d, v%d, v%d" % (vP + 4 * u, UP(0, u), vdtl), wr=[vP + 4 * u])
    e.valu("v_mul_f32 v%d, v%d, v%d" % (UP(4, u), UP(4, u), vdt), wr=[UP(4, u)])
    e.valu("v_mul_f32 v%d, v%d, v%d" % (UP(5, u), UP(5, u), vdt), wr=[UP(5, u)])
    e.valu("v_mul_f32 v%d, v%d, v%d" % (vP + 4 * u + 2, UP(2, u), UP(4, u)), wr=[vP + 4 * u + 2])
    e.valu("v_mul_f32 v%d, v%d, v%d" % (vP + 4 * u + 3, UP(2, u), UP(5, u)), wr=[vP + 4 * u + 3])
    e.valu("v_fma_f32 v%d, -v%d, v%d, v%d" % (vP + 4 * u + 2, UP(3, u), UP(5, u), vP + 4 * u + 2), wr=[vP + 4 * u + 2])
    e.valu("v_fma_f32 v%d, v%d, v%d, v%d" % (vP + 4 * u + 3, UP(3, u), UP(4, u), vP + 4 * u + 3), wr=[vP + 4 * u + 3])
e.label("L_prepDone")

def anchor_ops(pa):
    ops = []
    T = vT
    for (k, (P, vz)) in enumerate(((8, vZ8), (1, vZ1), (256, vZ256))):
        te, tf = T + 2 * k, T + 2 * k + 1
        if P == 1:
            ops.append(lambda te=te: e.valu("v_exp_f32 v%d, v%d" % (te, pa), wr=[te], trans=True))
            ops.append(lambda tf=tf: e.valu("v_fract_f32 v%d, v%d" % (tf, pa + 1), wr=[tf]))
        else:
            ops.append(lambda te=te, P=P: e.valu("v_mul_f32 v%d, 0x%x, v%d" % (te, f2u(float(P)), pa), wr=[te]))
            ops.append(lambda tf=tf, P=P: e.valu("v_mul_f32 v%d, 0x%x, v%d" % (tf, f2u(float(P)), pa + 1), wr=[tf]))
            ops.append(lambda te=te: e.valu("v_exp_f32 v%d, v%d" % (te, te), wr=[te], trans=True))
            ops.append(lambda tf=tf: e.valu("v_fract_f32 v%d, v%d" % (tf, tf), wr=[tf]))
        ops.append(lambda tf=tf, vz=vz: e.valu("v_cos_f32 v%d, v%d" % (vz, tf), wr=[vz], trans=True))
        ops.append(lambda tf=tf, vz=vz: e.valu("v_sin_f32 v%d, v%d" % (vz + 1, tf), wr=[vz + 1], trans=True))
        ops.append(lambda te=te, vz=vz: e.valu("v_mul_f32 v%d, v%d, v%d" % (vz, vz, te), rd=[vz, te], wr=[vz]))
        ops.append(lambda te=te, vz=vz: e.valu("v_mul_f32 v%d, v%d, v%d" % (vz + 1, vz + 1, te), rd=[vz + 1, te], wr=[vz + 1]))
    return ops
def cmul(d, x, m):
    e.valu("v_pk_mul_f32 %s, %s, %s op_sel_hi:[1,0]" % (vr(d, 2), vr(x, 2), vr(m, 2)), wr=[d, d + 1])
    e.valu("v_pk_fma_f32 %s, %s, %s, %s op_sel:[1,1,0] op_sel_hi:[0,1,1] neg_lo:[1,0,0]" % (vr(d, 2), vr(x, 2), vr(m, 2), vr(d, 2)), wr=[d, d + 1])
def wr2(r0, p0, r1, p1):
    assert 0
def wr1(r0, p0):
    e.ds("ds_write_addtid_b32 v%d offset:%d" % (p0, 272 * r0))

for op in anchor_ops(vP): op()
e.i("s_mov_b32 s40, 3")
e.label("L_kgen")
pk = lambda k: vPk + (k % 16)
e.valu("v_mov_b32 v%d, 0x3f80" % pk(0), wr=[pk(0)])
e.valu("v_cvt_pk_bf16_f32 v%d, v%d, v%d" % (pk(1), vZ8, vZ8 + 1), wr=[pk(1)])
wr1(0, pk(0)); wr1(1, pk(1))
prev = vZ8
for c in range(2, 32):
    cur = vCh + 2 * (c % 2)
    cmul(cur, prev, vZ8)
    e.valu("v_cvt_pk_bf16_f32 v%d, v%d, v%d" % (pk(c), cur, cur + 1), wr=[pk(c)])
    wr1(c, pk(c))
    prev = cur
for s in range(8):
    e.ds("ds_read_b128 %s, v%d offset:%d" % (vr(vVF + 4 * s, 4), vRB, 32 * s), tag="VF", wr=R(vVF + 4 * s, 4))
def mrow(h, r): return 8 * (r >> 2) + 4 * h + (r & 3)
SROW = {}
for r in range(9): SROW[r] = mrow(0, r)
for r, x in ((0, 0), (2, 2), (3, 4), (6, 6), (7, 8)): SROW[256 + x] = mrow(1, r)
for r, x in enumerate((0, 4, 8)): SROW[512 + x] = mrow(0, 9 + r); SROW[768 + x] = mrow(1, 9 + r)
SROW[1032] = mrow(0, 12); SROW[1288] = mrow(0, 13); SROW[1544] = mrow(1, 12); SROW[1800] = mrow(1, 13)
wreg = {0: vP + 2}
seq = [(p, p - 1, vZ1) for p in range(1, 9)] + [(256 + x, x, vZ256) for x in (0, 2, 4, 6, 8)] + \
      [(512 + x, 256 + x, vZ256) for x in (0, 4, 8)] + [(768 + x, 512 + x, vZ256) for x in (0, 4, 8)] + \
      [(1032, 776, vZ256), (1288, 1032, vZ256), (1544, 1288, vZ256), (1800, 1544, vZ256)]
pend = {}
cnt = [0]
remaining = {}
for P in SROW: remaining[SROW[P] // 4] = remaining.get(SROW[P] // 4, 0) + 1
def emitW(P):
    p = pk(cnt[0]); cnt[0] += 1
    e.valu("v_cvt_pk_bf16_f32 v%d, v%d, -v%d" % (p, wreg[P], wreg[P] + 1), wr=[p])
    wr1(SROW[P], p)
emitW(0)
for k, (P, src, m) in enumerate(seq):
    wreg[P] = vCh + 2 * (k % 16)
    cmul(wreg[P], wreg[src], m)
    emitW(P)
assert not pend
for s in range(8):
    e.ds("ds_read_b128 %s, v%d offset:%d" % (vr(vWF + 4 * s, 4), vRA, 32 * s), tag="WF%d" % s, wr=R(vWF + 4 * s, 4))
for k in range(8): e.valu("v_mov_b32 v%d, v%d" % (vP + k, vP + 4 + k), wr=[vP + k])
aops = anchor_ops(vP)
per = (len(aops) + 7) // 8
for s in range(8):
    e.wait("WF%d" % s)
    e.mfma(32, vKacc, vWF + 4 * s, vVF + 4 * s, vKacc)
    for op in aops[s * per:(s + 1) * per]: op()
e.i("s_sub_u32 s40, s40, 1")
e.i("s_cmp_lg_u32 s40, 0")
e.i("s_cbranch_scc1 L_kgen")
e.stamp(2)

e.i("s_waitcnt vmcnt(0)")
e.stamp(3)
for d in range(4):
    for half, sel in ((0, "s38"), (1, "s39")):
        ch = 2 * d + half
        t = vPk + 2 * ch
        e.valu("v_perm_b32 v%d, v%d, v%d, %s" % (t, vU + 4 + d, vU + d, sel), wr=[t])
        e.valu("v_perm_b32 v%d, v%d, v%d, %s" % (t + 1, vU + 12 + d, vU + 8 + d, sel), wr=[t + 1])
        e.ds("ds_write_b64 v%d, %s offset:%d" % (vUw, vr(t, 2), ch * USZ + 480))

K = vKacc
X = vCh
e.valu("v_lshrrev_b32 v%d, 2, v%d" % (vT, vLane), wr=[vT])
e.valu("v_mul_u32_u24 v%d, 2112, v%d" % (vT, vT), wr=[vT])
e.valu("v_and_b32 v%d, 3, v%d" % (vT + 1, vLane), wr=[vT + 1])
e.valu("v_lshl_add_u32 v%d, v%d, 4, v%d" % (vT, vT + 1, vT), wr=[vT])
e.valu("v_add_u32 v%d, s34, v%d" % (vT, vT), wr=[vT])
for k in range(4): e.valu("v_mov_b32 v%d, 0" % (X + 16 + k), wr=[X + 16 + k])
e.i("s_mov_b64 exec, 0xfff")
e.ds("ds_write_b128 v%d, %s offset:256" % (vT, vr(X + 16, 4)))
e.i("s_mov_b64 exec, -1")
e.valu("v_add_f32 v%d, v%d, v%d" % (K, K, vD), rd=[K], wr=[K])
def cv(d, a, b): e.valu("v_cvt_pk_bf16_f32 v%d, v%d, v%d" % (d, a, b), rd=[a, b], wr=[d])
for k in range(4): cv(X + k, K + 7 - 2 * k, K + 6 - 2 * k)
e.ds("ds_write_b128 v%d, %s offset:%d" % (vKx, vr(X, 4), 16 + 1024))
for k in range(4): cv(X + 4 + k, K + 8 - 2 * k, K + 7 - 2 * k)
e.ds("ds_write_b128 v%d, %s offset:%d" % (vKx, vr(X + 4, 4), 16 + 1024 + 2112))
k0, k4, k8 = K + 9, K + 10, K + 11
for k, (a, b) in enumerate(((k8, k8), (k4, k4), (k4, k0), (k0, k0))): cv(X + 8 + k, a, b)
e.ds("ds_write_b128 v%d, %s offset:%d" % (vKx, vr(X + 8, 4), 16))
for k, (a, b) in enumerate(((k8, k8), (k8, k4), (k4, k4), (k0, k0))): cv(X + 12 + k, a, b)
e.ds("ds_write_b128 v%d, %s offset:%d" % (vKx, vr(X + 12, 4), 16 + 2112))
cv(X + 24, K + 12, K + 13)
e.ds("ds_write_b16 v%d, v%d offset:64" % (vKdW, X + 24))
e.ds("ds_write_b16_d16_hi v%d, v%d" % (vKdW, X + 24))
e.valu("v_mov_b32 v%d, v%d" % (X + 18, X + 8), wr=[X + 18])
e.valu("v_mov_b32 v%d, v%d" % (X + 19, X + 8), wr=[X + 19])
e.valu("v_mov_b32 v%d, 0" % (X + 20), wr=[X + 20])
e.valu("v_and_b32 v%d, 0xffff0000, v%d" % (X + 21, X + 8), wr=[X + 21])
e.valu("v_mov_b32 v%d, v%d" % (X + 22, X + 8), wr=[X + 22])
e.valu("v_mov_b32 v%d, v%d" % (X + 23, X + 8), wr=[X + 23])
e.i("s_mov_b32 exec_lo, 0")
e.i("s_mov_b32 exec_hi, 0x80000000")
e.ds("ds_write_b128 v%d, %s" % (vKx, vr(X + 20, 4)))
e.ds("ds_write_b128 v%d, %s offset:2112" % (vKx, vr(X + 16, 4)))
e.i("s_mov_b64 exec, 1")
e.ds("ds_write_b16_d16_hi v%d, v%d offset:%d" % (vKx, X + 3, 16 + 1024 + 2112 + 16))
e.i("s_mov_b64 exec, -1")
e.waitall()
for sg in range(33):
    idx = 32 - sg
    a = vAad + (idx >> 4); o = 16 * (idx & 15)
    e.ds("ds_read2_b32 %s, v%d offset0:%d offset1:%d" % (vr(vAF + 4 * sg, 2), a, o, o + 1), wr=R(vAF + 4 * sg, 2))
    e.ds("ds_read2_b32 %s, v%d offset0:%d offset1:%d" % (vr(vAF + 4 * sg + 2, 2), a, o + 2, o + 3), wr=R(vAF + 4 * sg + 2, 2))
for q in range(4, 8):
    o = 16 * (7 - q); d = vKdF + 4 * (q - 4)
    e.ds("ds_read2_b32 %s, v%d offset0:%d offset1:%d" % (vr(d, 2), vKdA, o, o + 1))
    e.ds("ds_read2_b32 %s, v%d offset0:%d offset1:%d" % (vr(d + 2, 2), vKdA, o + 2, o + 3))
e.i("s_barrier")
e.stamp(4)

PASSES = [[0, 1, 2, 3, 4], [5, 6], [7]]
steps = []
for ps in PASSES:
    lo = max(-7, 8 * ps[0] - 32); hi = 8 * ps[-1]
    for nu in range(lo, hi + 1):
        acts = [("c", n, 8 * n - nu) for n in ps if 0 <= 8 * n - nu <= 32]
        if ps is PASSES[0] and nu in (0, 8, 16, 24):
            steps.append((64 * (nu + 7) - 16, [("fe", nu // 8)]))
            acts = [("fo", nu // 8)] + acts
        if acts: steps.append((64 * (nu + 7), acts))
started = set()
deferred = []
DEPTH = NBR - 1
def issue_read(k):
    if k < len(steps):
        r = vBR + 4 * (k % NBR)
        e.ds("ds_read_b128 %s, v%d offset:%d" % (vr(r, 4), vUrd, steps[k][0]), tag="B%d" % k)
def do_cvtF(b):
    for r in range(4): cv(vF + 4 * b + r, vFT + r, vFT + 4 + r)
def do_ywrite(n):
    a = vAcc + 4 * n
    cv(vYp, a, a + 1); cv(vYp + 1, a + 2, a + 3)
    e.ds("ds_write_b64 v%d, %s offset:%d" % (vYw, vr(vYp, 2), 512 * n), tag="Y%d" % n)
def do_bar(n):
    e.wait("Y%d" % n)
    e.i("s_barrier")
    e.ds("ds_read_b64_tr_b16 %s, v%d offset:%d" % (vr(vSt, 2), vTrA, 512 * n), tag="T%da" % n)
    e.ds("ds_read_b64_tr_b16 %s, v%d offset:%d" % (vr(vSt + 2, 2), vTrA, 512 * n + 4 * YS), tag="T%d" % n)
def do_store(n):
    e.wait("T%d" % n)
    e.i("s_mov_b32 exec_hi, 0")
    e.i("global_store_dwordx4 v%d, %s, s[8:9]" % (vOutA, vr(vSt, 4)))
    e.i("s_mov_b32 exec_hi, -1")
    e.valu("v_add_u32 v%d, %d, v%d" % (vOutA, 256 * 2560, vOutA), wr=[vOutA])
for k in range(DEPTH): issue_read(k)
for k, (off, acts) in enumerate(steps):
    issue_read(k + DEPTH)
    e.wait("B%d" % k)
    b = vBR + 4 * (k % NBR)
    for a in acts:
        if a[0] == "fe": e.mfma(16, vFT, b, vBox9)
        elif a[0] == "fo":
            e.mfma(16, vFT + 4, b, vBox7)
            deferred.append((k + 2, lambda bb=a[1]: do_cvtF(bb)))
        else:
            _, n, sg = a
            acc = vAcc + 4 * n
            e.mfma(16, acc, vAF + 4 * sg, b, acc if n in started else None)
            started.add(n)
            if sg == 8 and n >= 4:
                for fb in range(n - 3):
                    e.mfma(16, acc, vF + 4 * fb, vKdF + 4 * (n - fb - 4), acc)
            if sg == 0:
                deferred.append((k + 2, lambda nn=n: do_ywrite(nn)))
                deferred.append((k + 4, lambda nn=n: do_bar(nn)))
                deferred.append((k + 6, lambda nn=n: do_store(nn)))
    due = [d for d in deferred if d[0] <= k]
    deferred = [d for d in deferred if d[0] > k]
    for d in due: d[1]()
for d in sorted(deferred, key=lambda x: x[0]): d[1]()
e.stamp(5)
if STAMP:
    e.i("s_waitcnt vmcnt(0)")
    e.stamp(6)
    if DBG:
        e.i("s_memrealtime s[74:75]")
        e.waitall()
        e.i("s_sub_u32 s74, s74, s80")
        e.i("s_add_u32 s74, s74, s60")
    e.i("s_lshl_b32 s41, s2, 3")
    e.i("s_add_u32 s41, s41, s3")
    if DBG:
        e.i("s_and_b32 s43, s41, 0xfffffffb")
        e.i("s_cmp_lg_u32 s43, 0")
        e.i("s_cbranch_scc1 L_end")
        e.i("s_lshr_b32 s41, s41, 2")
    e.i("s_lshl_b32 s41, s41, 5")
    e.i("s_mov_b64 exec, 1")
    for k in range(1, 8 if DBG else 7):
        e.i("s_sub_u32 s42, s%d, s60" % (60 + 2 * k))
        e.i("v_mov_b32 v1, s41")
        e.i("v_mov_b32 v2, s42")
        e.i("global_store_dword v1, v2, s[10:11] offset:%d" % (4 * k))
        e.i("s_waitcnt vmcnt(0)")
e.label("L_end")
e.i("s_endpgm")
e.raw(""".section .rodata,"a"
.p2align 6
.amdhsa_kernel %s
  .amdhsa_next_free_vgpr 256
  .amdhsa_next_free_sgpr 102
  .amdhsa_accum_offset 256
  .amdhsa_group_segment_fixed_size 0
  .amdhsa_kernarg_size 152
  .amdhsa_user_sgpr_count 2
  .amdhsa_user_sgpr_kernarg_segment_ptr 1
  .amdhsa_system_sgpr_workgroup_id_x 1
.end_amdhsa_kernel""" % NAME)
open(OUT, "w").write("\n".join(e.o) + "\n")
print("wrote", OUT, "instrs", e.n, "lds", LDS, "steps", len(steps))
```
